```python
import torch

def _softmax(x, axis=-1):
    return torch.softmax(x, dim=axis)
def _gelu(x):
    return torch.nn.functional.gelu(x, approximate="tanh")
def _silu(x):
    return torch.nn.functional.silu(x)
def _sigmoid(x):
    return torch.sigmoid(x)
def _layernorm(x, axis=-1, eps=1e-5):
    m = x.mean(dim=axis, keepdim=True)
    v = x.var(dim=axis, keepdim=True, unbiased=False)
    return (x - m) / torch.sqrt(v + eps)
def _scatter_add(tgt, idx, src, axis=0):
    return tgt.clone().index_add_(axis, idx, src)
def _segment_sum(src, seg, n):
    out = torch.zeros((n,) + src.shape[1:], dtype=src.dtype)
    return out.index_add_(0, seg, src)
def _pad(x, pw):
    flat = tuple(v for pair in reversed(pw) for v in pair)
    return torch.nn.functional.pad(x, flat)

kernel_name = 'parallel_sum__sliding_block_cached__dense_activation_gelu__decode'

def setup_inputs():

    _w = (lambda a: (lambda t: t.to(torch.bfloat16) if t.is_floating_point() else t)(torch.as_tensor(a)))
    def _A_setup():
        B, Sq, D = 1, 1, 512
        Hq, Hkv, Sk, Dh = 32, 8, 65536, 128
        assert Hq % Hkv == 0, (Hq, Hkv)
        return {
            "x": _w((lambda *s: torch.randn(*s, dtype=torch.bfloat16) * 0.05)(B, Sq, D)),
            "k_cache": _w((lambda *s: torch.randn(*s, dtype=torch.bfloat16) * 1.6)(B, Hkv, Sk, Dh)),
            "v_cache": _w((lambda *s: torch.randn(*s, dtype=torch.bfloat16) * 0.8)(B, Hkv, Sk, Dh)),
            "wq": _w((lambda *s: torch.randn(*s, dtype=torch.bfloat16) * 1.6)(D, Hq * Dh) * (D ** -0.5)),
            "wo": _w((lambda *s: torch.randn(*s, dtype=torch.bfloat16) * 0.8)(Hq * Dh, D) * ((Hq * Dh) ** -0.5)),
        }
    _A_in = _A_setup()

    def _B_setup():
        B, S, D, F = 1, 1, 512, 1792
        return {
            "x": _w((lambda *s: torch.randn(*s, dtype=torch.bfloat16) * 0.05)(B, S, D)),
            "w1": _w((lambda *s: torch.randn(*s, dtype=torch.bfloat16) * 0.4)(D, F) * (D ** -0.5)),
            "b1": _w((lambda *s: torch.randn(*s, dtype=torch.bfloat16) * 0.4)(F) * 0.01),
            "w2": _w((lambda *s: torch.randn(*s, dtype=torch.bfloat16) * 0.4)(F, D) * (F ** -0.5)),
            "b2": _w((lambda *s: torch.randn(*s, dtype=torch.bfloat16) * 0.4)(D) * 0.01),
        }
    _B_in = _B_setup()

    return {
        "A_x": _A_in["x"],
        "A_k_cache": _A_in["k_cache"],
        "A_v_cache": _A_in["v_cache"],
        "A_wq": _A_in["wq"],
        "A_wo": _A_in["wo"],
        "B_x": _B_in["x"],
        "B_w1": _B_in["w1"],
        "B_b1": _B_in["b1"],
        "B_w2": _B_in["w2"],
        "B_b2": _B_in["b2"],
    }

def reference(A_x, A_k_cache, A_v_cache, A_wq, A_wo, B_x, B_w1, B_b1, B_w2, B_b2):
    def _A_ref(x, k_cache, v_cache, wq, wo):
        B, Sq, D = x.shape
        Hq, Dh = 32, 128
        Hkv, Sk = k_cache.shape[1], k_cache.shape[2]
        W = min(4096, max(256, Sk // 4))
        rep = Hq // Hkv
        q = (lambda x, *d: x.permute(*d))((x @ wq).reshape(B, Sq, Hq, Dh), 0, 2, 1, 3)
        k = (lambda x, n, axis: torch.repeat_interleave(x, n, dim=axis))(k_cache[:, :, Sk - W:, :], rep, axis=1)
        v = (lambda x, n, axis: torch.repeat_interleave(x, n, dim=axis))(v_cache[:, :, Sk - W:, :], rep, axis=1)
        scores = torch.einsum("bhqd,bhkd->bhqk", q, k) * (Dh ** -0.5)
        p = _softmax(scores, axis=-1)
        o = torch.einsum("bhqk,bhkd->bhqd", p, v)
        return (lambda x, *d: x.permute(*d))(o, 0, 2, 1, 3).reshape(B, Sq, Hq * Dh) @ wo

    def _B_ref(x, w1, b1, w2, b2):
        h = torch.einsum("bsd,df->bsf", x, w1) + b1
        h = _gelu(h)
        return torch.einsum("bsf,fd->bsd", h, w2) + b2

    x = A_x
    xn = _layernorm(x, axis=-1)
    return x + _A_ref(xn, A_k_cache, A_v_cache, A_wq, A_wo) + _B_ref(xn, B_w1, B_b1, B_w2, B_b2)
```

```python
NAME = "parallel_sum__sliding_block_cached__dense_activation_gelu__decode"
KNAME = NAME + "_kernel"

class Asm:
    def __init__(self):
        self.lines = []
        self.nlabel = 0
    def __call__(self, s):
        for l in s.strip("\n").split("\n"):
            self.lines.append("    " + l.strip() if l.strip() and not l.strip().endswith(":") else l.strip())
    def label(self, prefix="L"):
        self.nlabel += 1
        return "%s_%d" % (prefix, self.nlabel)
    def text(self):
        return "\n".join(self.lines) + "\n"

def kernel_file(body, grid, block, lds, vgpr=256, sgpr=102, accum=None, kname=KNAME, header=""):
    if accum is None:
        accum = min(256, (vgpr + 3) // 4 * 4)
    s = header
    s += "; @launch grid=(%d,1,1) block=(%d,1,1) lds=%d\n" % (grid, block, lds)
    s += '.amdgcn_target "amdgcn-amd-amdhsa--gfx950"\n.text\n.globl %s\n.p2align 8\n.type %s,@function\n%s:\n' % (kname, kname, kname)
    s += body
    s += '.section .rodata,"a"\n.p2align 6\n.amdhsa_kernel %s\n' % kname
    s += "  .amdhsa_next_free_vgpr %d\n  .amdhsa_next_free_sgpr %d\n  .amdhsa_accum_offset %d\n" % (vgpr, sgpr, accum)
    s += "  .amdhsa_group_segment_fixed_size 0\n  .amdhsa_kernarg_size 104\n  .amdhsa_user_sgpr_count 2\n"
    s += "  .amdhsa_user_sgpr_kernarg_segment_ptr 1\n  .amdhsa_system_sgpr_workgroup_id_x 1\n"
    s += "  .amdhsa_float_denorm_mode_32 3\n"
    s += ".end_amdhsa_kernel\n"
    return s
```

```python
import re, sys
def regs(tok):
    tok = tok.strip()
    neg = tok.lstrip('-')
    if neg.startswith('abs(') : neg = neg[4:-1]
    if neg.startswith('|'): neg = neg.strip('|')
    m = re.match(r'^([vsa])(\d+)$', neg)
    if m: return {(m.group(1), int(m.group(2)))}
    m = re.match(r'^([vsa])\[(\d+):(\d+)\]$', neg)
    if m: return {(m.group(1), i) for i in range(int(m.group(2)), int(m.group(3))+1)}
    if neg == 'vcc': return {('s', 106), ('s', 107)}
    if neg == 'exec': return {('s', 126), ('s', 127)}
    if neg == 'm0': return {('s', 124)}
    return set()
TRANS = ('v_exp_f32','v_log_f32','v_rcp_f32','v_rsq_f32','v_sqrt_f32','v_sin_f32','v_cos_f32')
def parse(line):
    line = line.split(';')[0].strip()
    if not line or line.endswith(':') or line.startswith('.'): return None
    parts = line.split(None, 1)
    op = parts[0]; rest = parts[1] if len(parts) > 1 else ''
    ops = []; depth = 0; cur = ''
    for ch in rest:
        if ch == '[': depth += 1
        if ch == ']': depth -= 1
        if ch == ',' and depth == 0: ops.append(cur.strip()); cur = ''
        else: cur += ch
    if cur.strip(): ops.append(cur.strip())
    mods = ''
    if ops:
        last = ops[-1].split(None, 1)
        ops[-1] = last[0]
        if len(last) > 1: mods = last[1]
    return op, ops, mods
def classify(op, ops, mods):
    d = dict(op=op, valu=False, mfma=False, vmem=False, ds=False, salu=False, w=set(), r=set(), dpp=False, perm=False, trans=False, rl=False, ldsdma=False, storedata=set(), passes=0, srcc=set())
    R = [regs(o) for o in ops]
    if op.startswith('v_mfma'):
        d['mfma'] = True; d['w'] = R[0]; d['r'] = R[1] | R[2] | R[3]; d['srcc'] = R[3]; d['passes'] = 4 if '16x16' in op else 8
    elif op.startswith('v_'):
        d['valu'] = True
        d['trans'] = any(op.startswith(t) for t in TRANS)
        d['dpp'] = 'dpp' in op or 'quad_perm' in mods or 'row_' in mods
        if op.startswith('v_permlane'):
            d['perm'] = True; d['w'] = R[0] | R[1]; d['r'] = R[0] | R[1]
        elif op.startswith('v_cmp'):
            d['w'] = R[0]; d['r'] = set().union(*R[1:])
        elif op.startswith('v_readfirstlane') or op.startswith('v_readlane'):
            d['rl'] = True; d['w'] = R[0]; d['r'] = set().union(*R[1:])
        else:
            d['w'] = R[0]; d['r'] = set().union(*R[1:]) if len(R) > 1 else set()
            if op.startswith('v_fmac') or op.startswith('v_dot2c') or d['dpp']: d['r'] |= R[0]
            if op.startswith('v_cndmask') and len(ops) == 3: d['r'] |= regs('vcc')
    elif op.startswith('buffer_') or op.startswith('global_'):
        d['vmem'] = True
        alls = set().union(*R)
        if 'lds' in mods.split():
            d['ldsdma'] = True; d['r'] = alls | regs('m0')
        elif 'load' in op:
            d['w'] = R[0]; d['r'] = set().union(*R[1:])
        else:
            d['r'] = alls
            if 'x3' in op or 'x4' in op: d['storedata'] = R[0]
    elif op.startswith('ds_'):
        d['ds'] = True
        if 'read' in op or 'bpermute' in op or 'swizzle' in op: d['w'] = R[0]; d['r'] = set().union(*R[1:])
        else: d['r'] = set().union(*R)
    elif op.startswith('s_'):
        d['salu'] = True
        if op.startswith('s_cmp') or op.startswith('s_cbranch') or op.startswith('s_waitcnt') or op.startswith('s_nop') or op.startswith('s_barrier'):
            d['r'] = set().union(*R) if R else set()
        else:
            d['w'] = R[0] if R else set(); d['r'] = set().union(*R[1:]) if len(R) > 1 else set()
    return d
def lint(text):
    ins = []
    for n, l in enumerate(text.split('\n'), 1):
        p = parse(l)
        if p: ins.append((n, l.strip(), classify(*p)))
    probs = []
    for i, (n, l, c) in enumerate(ins):
        dist = 0
        for k in range(i-1, max(-1, i-24), -1):
            pn, pl, p = ins[k]
            need = 0; why = ''
            vw = {x for x in p['w'] if x[0] in 'va'}; sw = {x for x in p['w'] if x[0] == 's'}
            if p['valu']:
                if c['dpp'] and (vw & c['r']): need, why = 2, 'valu->dpp'
                if c['perm'] and (vw & c['r']): need, why = 2, 'valu->permlane'
                if c['mfma'] and (vw & c['r']): need, why = 2, 'valu->mfma'
                if c['rl'] and (vw & c['r']): need, why = max(need, 1), 'valu->readlane'
                if p['trans'] and c['valu'] and not c['trans'] and (vw & c['r']): need, why = max(need, 1), 'trans->valu'
                if sw & c['r']:
                    if c['valu']: need, why = max(need, 2), 'valu sgpr->valu'
                    if c['vmem']: need, why = max(need, 5), 'valu sgpr->vmem'
                    if c['rl']: need, why = max(need, 4 if False else 2), 'valu sgpr->lane'
            if p['mfma']:
                lat = {4: 8, 8: 12}[p['passes']]
                if c['mfma']:
                    if vw & c['srcc'] and c['srcc'] != p['w']: need, why = lat-2, 'mfma->srcC overlap'
                    if vw & (c['r'] - c['srcc']): need, why = lat, 'mfma->mfma AB'
                elif (c['valu'] or c['vmem'] or c['ds']) and (vw & (c['r'] | c['w'])): need, why = lat, 'mfma->valu/mem'
                if c['valu'] and (p['srcc'] & c['w']): need, why = max(need, {4: 3, 8: 7}[p['passes']]), 'mfma srcC WAR'
            if p['storedata'] and (c['valu'] or c['ds'] or c['vmem']) and (p['storedata'] & c['w']): need, why = max(need, 2), 'store data WAR'
            if p['salu'] and c['ldsdma'] and (('s', 124) in p['w']): need, why = max(need, 1), 'm0->ldsdma'
            if need > dist:
                probs.append("line %d: %s needs %d wait states after line %d (%s), has %d [%s]" % (n, l, need, pn, pl, dist, why))
            if p['op'] == 's_nop': dist += int(pl.split()[1]) + 1
            else: dist += 1
            if dist > 20: break
    return probs
if __name__ == '__main__':
    for p in lint(open(sys.argv[1]).read()): print(p)
```

```python
import sys
from asmlib import *
import lint

WQ_L, K_L, V_L, WO_L, W1_L, W2_L = 0, 16384, 49152, 81920, 98304, 106496
XN_L = 114688
QS_L = XN_L + 1024
PS_L = QS_L + 1152
MX_L = PS_L + 1152
R_L = MX_L + 256
HS_L = R_L + 2304
TG_L = HS_L + 128
LDS_BYTES = 122880
Q_OFF, H_OFF, ML_OFF, A3_OFF, F3_OFF, O_OFF = 0x10000, 0x20000, 0x30000, 0x40000, 0x50000, 0x80000
QG_DELTA = 0x50000
WS_SIZE = 0x100000
ST_OFF = 0x1000000
OOB = 0x40000000
LOG2E = "0x3fb8aa3b"
SCALE = "0x3db504f3"
SPIN = 0x80000

def gen(path, diag=False, pf=True, nt=True, opts=None):
    o = dict(pfwgs=16, k_first=2, pre=True, force_remote=False)
    o.update(opts or {})
    a = Asm()
    NT = " nt" if nt else ""
    names = {"att": [], "aux": []}
    role = ["att"]
    def ST(name):
        if not diag: return
        n = len(names[role[0]])
        assert n < 14
        a("s_memrealtime s[%d:%d]" % (74 + 2*n, 75 + 2*n))
        names[role[0]].append(name)
    def dump_stamps(tag):
        if not diag: return
        n = len(names[role[0]])
        a("s_mov_b64 exec, -1")
        a("s_waitcnt vmcnt(0) lgkmcnt(0)")
        a("s_mov_b32 s34, 0x20000000")
        a("s_mul_i32 s64, s2, 9"); a("s_add_u32 s64, s64, s3"); a("s_lshl_b32 s64, s64, 7"); a("s_add_u32 s64, s64, 0x%x" % ST_OFF)
        a("v_mov_b32 v1, 0")
        a("v_mov_b32 v2, s72"); a("buffer_store_dword v2, v1, s[32:35], s64 offen")
        for i in range(n):
            a("v_mov_b32 v%d, s%d" % (3+i, 74 + 2*i)); a("buffer_store_dword v%d, v1, s[32:35], s64 offen offset:%d" % (3+i, 4 + 4*i))
        a("v_mov_b32 v20, s70"); a("buffer_store_dword v20, v1, s[32:35], s64 offen offset:%d" % (4*31))
    def dma(vaddr, srd, soff, imm=0):
        a("buffer_load_dwordx4 v%d, s[%d:%d], %s offen%s%s lds" % (vaddr, srd, srd+3, soff, (" offset:%d" % imm) if imm else "", NT))
    def vr(i, n=4): return "v[%d:%d]" % (i, i+n-1)
    def ex(lo, hi=None):
        if lo == -1: a("s_mov_b64 exec, -1"); return
        a("s_mov_b32 exec_lo, 0x%x" % lo); a("s_mov_b32 exec_hi, 0x%x" % (lo if hi is None else hi))
    def tagcheck(grans, acc, t1):
        first = True
        for gq in grans:
            if first:
                a("v_bitop3_b32 v%d, v%d, v%d, s59 bitop3:0x7e" % (acc, gq, gq+1))
                a("v_bitop3_b32 v%d, v%d, v%d, s59 bitop3:0x7e" % (t1, gq+2, gq+3))
                a("v_or_b32 v%d, v%d, v%d" % (acc, acc, t1)); first = False
            else:
                a("v_bitop3_b32 v%d, v%d, v%d, s59 bitop3:0x7e" % (t1, gq, gq+1))
                a("v_bitop3_b32 v%d, v%d, v%d, s59 bitop3:0x7e" % (t1+1, gq+2, gq+3))
                a("v_or3_b32 v%d, v%d, v%d, v%d" % (acc, acc, t1, t1+1))
        a("v_and_b32 v%d, s60, v%d" % (acc, acc))
    def untag(r0, n=4):
        for i in range(n): a("v_and_b32 v%d, s63, v%d" % (r0+i, r0+i))
    def addtag(dst, src, vT, n=4):
        for i in range(n): a("v_and_or_b32 v%d, v%d, s63, v%d" % (dst+i, src+i, vT))
    def rscatter4(r, op="v_add_f32"):
        a("v_permlane32_swap_b32 v%d, v%d" % (r, r+2)); a("v_permlane32_swap_b32 v%d, v%d" % (r+1, r+3))
        a("%s v%d, v%d, v%d" % (op, r, r, r+2)); a("%s v%d, v%d, v%d" % (op, r+1, r+1, r+3))
        a("s_nop 1")
        a("v_permlane16_swap_b32 v%d, v%d" % (r, r+1))
        a("%s v%d, v%d, v%d" % (op, r, r, r+1))
    def allred_rows(r, t, op):
        a("v_mov_b32 v%d, v%d" % (t, r)); a("s_nop 1"); a("v_permlane16_swap_b32 v%d, v%d" % (r, t)); a("%s v%d, v%d, v%d" % (op, r, r, t))
        a("v_mov_b32 v%d, v%d" % (t, r)); a("s_nop 1"); a("v_permlane32_swap_b32 v%d, v%d" % (r, t)); a("%s v%d, v%d, v%d" % (op, r, r, t))
    def dpp(op, d, ror):
        a("%s_dpp v%d, v%d, v%d row_ror:%d row_mask:0xf bank_mask:0xf" % (op, d, d, d, ror))
    def spin(label):
        a("s_add_u32 s70, s70, 1"); a("s_cmp_lt_u32 s70, 0x%x" % SPIN); a("s_cbranch_scc1 %s" % label)
    def tags():
        a("s_add_u32 s57, s57, 1"); a("s_and_b32 s59, s57, 0xff"); a("v_mov_b32 v10, s59")

    if diag: a("s_memrealtime s[72:73]")
    a("s_load_dwordx2 s[8:9], s[0:1], 24")
    a("s_load_dwordx2 s[4:5], s[0:1], 0")
    a("s_load_dwordx2 s[12:13], s[0:1], 8")
    a("s_load_dwordx2 s[32:33], s[0:1], 96")
    a("v_lshrrev_b32 v1, 6, v0")
    a("v_and_b32 v0, 63, v0")
    a("s_lshr_b32 s48, s2, 8")
    a("v_readfirstlane_b32 s3, v1")
    a("s_cbranch_scc1 L_end")
    a("s_lshr_b32 s49, s2, 6")
    a("s_and_b32 s51, s2, 7")
    a("s_cmp_eq_u32 s3, 8")
    a("s_cbranch_scc1 L_aux")
    a("v_lshlrev_b32 v2, 4, v0"); a("v_and_b32 v2, 0x70, v2")
    a("v_lshlrev_b32 v3, 1, v0"); a("v_and_b32 v3, 32, v3"); a("v_xor_b32 v2, v2, v3")
    a("v_lshrrev_b32 v3, 3, v0"); a("v_lshl_or_b32 v2, v3, 13, v2"); a("v_xor_b32 v4, 64, v2")
    a("s_lshl_b32 s50, s49, 20"); a("s_lshl_b32 s52, s51, 10"); a("s_add_u32 s50, s50, s52")
    a("s_bfe_u32 s53, s2, 0x30003")
    a("s_lshl_b32 s52, s53, 7"); a("s_add_u32 s50, s50, s52")
    a("s_lshl_b32 s52, s3, 17"); a("s_add_u32 s50, s50, s52"); a("s_add_u32 s54, s50, 0x10000")
    a("s_lshl_b32 m0, s3, 11")
    a("s_mov_b32 s10, 0x400000"); a("s_mov_b32 s11, 0x20000")
    a("s_waitcnt lgkmcnt(0)")
    dma(2, 8, "s50")
    a("s_add_u32 m0, m0, 0x400"); a("s_nop 0")
    dma(4, 8, "s54")
    a("s_branch L_att")
    a(".p2align 8")
    role[0] = "aux"
    a("L_aux:")
    a("s_movk_i32 s6, 1024"); a("s_mov_b32 s7, 0x20000")
    a("v_lshlrev_b32 v1, 4, v0")
    a("s_mov_b32 s34, 0x%x" % WS_SIZE); a("s_mov_b32 s35, s7")
    a("v_mov_b32 v2, 0")
    a("s_waitcnt lgkmcnt(0)")
    a("buffer_load_dwordx4 v[12:15], v1, s[4:7], 0 offen")
    a("buffer_load_dword v36, v2, s[32:35], 0 offen sc1")
    a("s_load_dwordx2 s[24:25], s[0:1], 48")
    if pf:
        a("s_cmp_ge_u32 s2, %d" % o["pfwgs"]); a("s_cbranch_scc1 L_aux2")
        a("s_getpc_b64 s[64:65]")
        a("L_pcref:")
        a("s_sub_u32 s64, s64, L_pcref-%s" % KNAME); a("s_subb_u32 s65, s65, 0")
        a("s_mov_b32 s66, L_codeend-%s" % KNAME); a("s_mov_b32 s67, s7")
        a("v_lshlrev_b32 v2, 7, v0")
        a("buffer_load_dword v38, v2, s[64:67], 0 offen offset:256")
    a("s_branch L_aux2")
    role[0] = "att"
    a("L_att:")
    a("s_load_dwordx2 s[16:17], s[0:1], 16")
    a("s_load_dwordx2 s[20:21], s[0:1], 32")
    ST("a0")
    a("v_lshrrev_b32 v5, 4, v0")
    a("v_and_b32 v1, 15, v0")
    a("v_xor_b32 v6, v1, v5"); a("v_lshlrev_b32 v6, 4, v6"); a("v_lshl_or_b32 v6, v5, 8, v6")
    a("v_xor_b32 v7, 64, v6")
    a("s_lshr_b32 s55, s2, 3")
    a("s_lshl_b32 s56, s51, 24"); a("s_lshl_b32 s52, s55, 15"); a("s_add_u32 s56, s56, s52")
    a("s_lshl_b32 s52, s3, 12"); a("s_add_u32 s56, s56, s52"); a("s_add_u32 s56, s56, 0x%x" % (61440*256))
    a("s_add_u32 s64, s52, %d" % K_L); a("s_add_u32 s65, s52, %d" % V_L)
    a("s_mov_b32 m0, s64")
    a("s_mov_b32 s14, 0x8000000"); a("s_mov_b32 s15, 0x20000")
    dma(6, 12, "s56", 0); dma(7, 12, "s56", 1024)
    a("v_xor_b32 v38, 0x80, v6"); a("v_xor_b32 v39, 0xc0, v6")
    nk = 2
    if o["k_first"] >= 3: dma(38, 12, "s56", 2048); nk = 3
    a("s_mov_b32 s18, 0x8000000"); a("s_mov_b32 s19, 0x20000")
    a("s_mov_b32 s22, 0x400000"); a("s_mov_b32 s23, 0x20000")
    a("s_mov_b32 s34, 0x%x" % WS_SIZE); a("s_mov_b32 s35, 0x20000")
    a("s_movk_i32 s60, 0xff"); a("s_mov_b32 s63, 0xffffff00"); a("s_mov_b32 s70, 0")
    a("v_lshlrev_b32 v8, 1, v5"); a("v_xor_b32 v8, v1, v8"); a("v_lshlrev_b32 v8, 4, v8"); a("v_lshl_or_b32 v8, v5, 8, v8")
    a("v_xor_b32 v9, 0x80, v8")
    a("v_mov_b32 v88, %d" % TG_L)
    a("v_lshrrev_b32 v2, 2, v1"); a("v_and_b32 v3, 3, v0")
    a("s_and_b32 s52, s3, 3"); a("s_lshl_b32 s66, s52, 5")
    a("v_lshl_add_u32 v11, v5, 3, v2"); a("v_lshlrev_b32 v11, 7, v11")
    a("v_lshlrev_b32 v40, 3, v3")
    a("v_and_b32 v41, 2, v2"); a("v_lshlrev_b32 v41, 4, v41")
    a("v_and_b32 v86, 1, v5"); a("v_lshlrev_b32 v86, 6, v86")
    a("v_or_b32 v43, v41, v86")
    a("v_xor_b32 v44, v40, v43"); a("v_xor_b32 v44, s66, v44"); a("v_or_b32 v11, v11, v44")
    a("s_lshl_b32 s52, s49, 8"); a("s_add_u32 s52, s52, %d" % XN_L)
    a("v_lshl_add_u32 v12, v5, 4, s52")
    a("s_cmp_ge_u32 s3, 4"); a("s_cselect_b32 s52, 0x%x, 0" % OOB); a("s_cselect_b32 s48, 0, 0x%x" % OOB)
    a("v_lshl_add_u32 v13, v5, 4, s52"); a("v_lshl_add_u32 v89, v5, 4, s48")
    a("s_getreg_b32 s57, hwreg(HW_REG_XCC_ID, 0, 3)"); a("s_lshl_b32 s57, s57, 5")
    a("s_lshl_b32 s67, s51, 13"); a("s_add_u32 s67, s67, 0x%x" % Q_OFF)
    a("s_lshl_b32 s52, s49, 11"); a("s_add_u32 s68, s67, s52"); a("s_lshl_b32 s52, s53, 8"); a("s_add_u32 s68, s68, s52")
    a("s_lshl_b32 s52, s66, 1"); a("s_add_u32 s68, s68, s52")
    a("s_lshl_b32 s52, s3, 8"); a("s_add_u32 s67, s67, s52")
    a("v_lshlrev_b32 v14, 4, v1"); a("v_lshl_or_b32 v14, v5, 11, v14")
    a("s_lshr_b32 s52, s3, 1"); a("s_mul_i32 s52, s52, 288"); a("s_and_b32 s48, s3, 1"); a("s_lshl_b32 s48, s48, 7")
    a("s_add_u32 s52, s52, s48"); a("s_add_u32 s52, s52, %d" % QS_L)
    a("v_lshl_add_u32 v15, v1, 2, v5"); a("v_lshl_add_u32 v15, v15, 1, s52")
    a("v_mul_u32_u24 v87, 288, v3")
    a("v_lshl_add_u32 v16, v5, 4, v87"); a("v_add_u32 v16, %d, v16" % QS_L)
    a("v_xor_b32 v17, v1, v5"); a("v_lshlrev_b32 v17, 4, v17"); a("v_lshl_or_b32 v17, v1, 8, v17"); a("v_add_u32 v17, s64, v17")
    a("v_xor_b32 v18, 64, v17"); a("v_xor_b32 v19, 0x80, v17"); a("v_xor_b32 v20, 0xc0, v17")
    a("s_waitcnt vmcnt(%d) lgkmcnt(0)" % nk)
    ST("wq")
    if nk < 3: dma(38, 12, "s56", 2048)
    dma(39, 12, "s56", 3072)
    a("s_barrier")
    ST("b1")
    a("ds_read_b32 v10, v88")
    for t in range(4):
        a("ds_read_b64_tr_b16 %s, v11 offset:%d" % (vr(40+4*t, 2), t*4096))
        a("ds_read_b64_tr_b16 %s, v11 offset:%d" % (vr(42+4*t, 2), t*4096 + 512))
        a("ds_read_b128 %s, v12 offset:%d" % (vr(56+4*t), t*64))
    for t in range(4):
        a("s_waitcnt lgkmcnt(%d)" % (0 if diag else 3*(3-t)))
        if t == 0: a("v_readfirstlane_b32 s59, v10")
        a("v_mfma_f32_16x16x32_bf16 v[72:75], %s, %s, %s" % (vr(40+4*t), vr(56+4*t), "0" if t == 0 else "v[72:75]"))
    a("v_lshl_add_u32 v21, v5, 3, v2"); a("v_lshlrev_b32 v21, 8, v21")
    a("v_lshlrev_b32 v46, 5, v2"); a("v_lshlrev_b32 v47, 1, v86"); a("v_or_b32 v46, v46, v47")
    a("v_lshlrev_b32 v47, 3, v3"); a("v_xor_b32 v46, v46, v47")
    a("s_lshl_b32 s52, s3, 5"); a("v_xor_b32 v46, s52, v46"); a("v_or_b32 v21, v21, v46"); a("v_add_u32 v21, %d, v21" % V_L)
    a("v_xor_b32 v94, s57, v10")
    addtag(90, 72, 10, 3); addtag(93, 75, 94, 1)
    ex(0x00010001)
    a("buffer_store_dwordx4 v[90:93], v13, s[32:35], s68 offen%s" % (" sc1" if o["force_remote"] else ""))
    ex(-1)
    a("s_add_u32 s58, s68, 0x%x" % QG_DELTA)
    ST("qpub")
    a("s_lshl_b32 s52, s3, 5"); a("s_add_u32 s52, s52, %d" % PS_L)
    a("v_lshl_add_u32 v22, v5, 3, v87"); a("v_add_u32 v22, s52, v22")
    a("v_lshlrev_b32 v24, 5, v3"); a("v_add_u32 v24, %d, v24" % MX_L)
    a("s_lshl_b32 s52, s3, 2"); a("v_add_u32 v23, s52, v24")
    a("v_lshlrev_b32 v25, 14, v3"); a("v_lshl_or_b32 v25, v5, 4, v25")
    a("s_cmp_ge_u32 s3, 1"); a("s_cselect_b32 s52, 0x%x, 0" % OOB)
    a("v_lshl_add_u32 v26, v3, 9, s52")
    a("v_lshlrev_b32 v27, 4, v0")
    a("v_lshrrev_b32 v28, 2, v0"); a("v_lshlrev_b32 v28, 4, v28")
    a("s_mov_b32 m0, s65")
    a("s_waitcnt vmcnt(4)"); dma(8, 16, "s56", 0)
    a("s_lshl_b32 s48, s3, 11"); a("s_add_u32 s66, s48, %d" % WO_L)
    a("v_lshl_add_u32 v29, v2, 2, v5"); a("v_lshlrev_b32 v29, 7, v29")
    a("v_lshlrev_b32 v46, 5, v2"); a("v_lshl_or_b32 v46, v3, 3, v46"); a("v_or_b32 v29, v29, v46"); a("v_add_u32 v29, s66, v29")
    a("v_xor_b32 v30, 32, v29"); a("v_xor_b32 v31, 64, v29"); a("v_xor_b32 v32, 0x60, v29")
    a("s_waitcnt vmcnt(4)"); dma(8, 16, "s56", 1024)
    a("v_lshlrev_b32 v36, 4, v0"); a("v_and_b32 v36, 0x70, v36"); a("v_and_b32 v46, 32, v0"); a("v_xor_b32 v36, v36, v46")
    a("v_lshrrev_b32 v46, 3, v0"); a("v_lshl_or_b32 v36, v46, 10, v36"); a("v_xor_b32 v37, 64, v36")
    a("v_mul_u32_u24 v33, 288, v46"); a("v_and_b32 v47, 7, v0"); a("v_lshl_add_u32 v33, v47, 2, v33")
    a("s_lshl_b32 s52, s3, 5"); a("s_add_u32 s52, s52, %d" % R_L); a("v_add_u32 v33, s52, v33")
    a("s_mul_i32 s52, s3, 288"); a("s_add_u32 s52, s52, %d" % R_L); a("v_lshl_add_u32 v34, v1, 4, s52")
    a("v_and_b32 v35, 1, v0"); a("v_lshlrev_b32 v35, 4, v35")
    a("s_waitcnt vmcnt(4)")
    ST("k2")
    a("buffer_load_dwordx4 v[76:79], v14, s[32:35], s67 offen sc1")
    a("s_lshl_b32 s52, s51, 16"); a("s_add_u32 s52, s52, s48"); a("s_add_u32 s52, s52, 0x%x" % O_OFF)
    a("s_lshl_b32 s68, s55, 6"); a("s_add_u32 s68, s68, s52")
    a("s_lshl_b32 s61, s49, 14"); a("s_add_u32 s61, s61, s52")
    a("s_lshl_b32 s52, s51, 11"); a("s_add_u32 s52, s52, 0x%x" % ML_OFF)
    a("s_lshl_b32 s69, s55, 4"); a("s_add_u32 s69, s69, s52")
    a("s_lshl_b32 s62, s49, 9"); a("s_add_u32 s62, s62, s52")
    a("s_waitcnt vmcnt(4)")
    ST("k3")
    dma(9, 16, "s56", 2048); dma(9, 16, "s56", 3072)
    ex(0x00010001)
    a("buffer_store_dwordx4 v[90:93], v89, s[32:35], s58 offen sc1")
    ex(-1)
    for t in range(4): a("ds_read_b128 %s, v%d" % (vr(40+4*t), 17+t))
    a("s_lshl_b32 s52, s51, 2"); a("s_add_u32 s52, s52, s49")
    a("s_lshl_b32 s50, s52, 17"); a("s_lshl_b32 s48, s3, 14"); a("s_add_u32 s50, s50, s48")
    a("s_lshl_b32 s48, s53, 7"); a("s_add_u32 s50, s50, s48"); a("s_add_u32 s54, s50, 8192")
    a("s_lshl_b32 s71, s52, 5"); a("s_lshl_b32 s48, s53, 13"); a("s_add_u32 s71, s71, s48")
    a("s_lshl_b32 s48, s3, 10"); a("s_add_u32 s71, s71, s48"); a("s_add_u32 s71, s71, 0x%x" % A3_OFF)
    a("s_mov_b32 m0, s66")
    a("s_mov_b32 s58, 0")
    a("s_waitcnt vmcnt(3)")
    a("L_qchk:")
    a("v_xor_b32 v82, s57, v79")
    a("v_bitop3_b32 v80, v76, v77, s59 bitop3:0x7e")
    a("v_bitop3_b32 v81, v78, v82, s59 bitop3:0x7e")
    a("v_or_b32 v83, v80, v81"); a("v_and_b32 v83, s60, v83")
    a("v_cmp_ne_u32 vcc, 0, v83")
    a("s_cbranch_vccz L_qok") if not o["force_remote"] else None
    a("v_xor_b32 v81, s59, v78"); a("v_xor_b32 v82, s59, v79"); a("v_and_b32 v82, 31, v82")
    a("v_or3_b32 v83, v80, v81, v82"); a("v_and_b32 v83, s60, v83")
    a("v_cmp_ne_u32 vcc, 0, v83")
    a("s_cbranch_vccz L_qrem")
    a("s_add_u32 s70, s70, 1"); a("s_and_b32 s48, s70, 31"); a("s_cmp_eq_u32 s48, 0"); a("s_cselect_b32 s48, 0x%x, 0" % QG_DELTA)
    a("s_add_u32 s48, s48, s67")
    a("buffer_load_dwordx4 v[76:79], v14, s[32:35], s48 offen sc1")
    a("s_cmp_lt_u32 s70, 0x%x" % SPIN)
    a("s_waitcnt vmcnt(0)")
    a("s_cbranch_scc1 L_qchk")
    a("L_qrem:")
    a("v_mov_b32 v80, 1")
    a("ds_write_b32 v88, v80 offset:4")
    a("L_qok:")
    ST("qok")
    dma(36, 20, "s50")
    untag(76)
    a("s_add_u32 m0, m0, 0x400")
    a("s_nop 0")
    rscatter4(76)
    a("v_cvt_pk_bf16_f32 v76, v76, v76")
    a("ds_write_b16 v15, v76")
    a("s_waitcnt lgkmcnt(0)")
    a("s_barrier")
    for t in range(4): a("ds_read_b128 %s, v16 offset:%d" % (vr(56+4*t), 64*t))
    for t in range(4):
        a("s_waitcnt lgkmcnt(%d)" % (0 if diag else 3-t))
        a("v_mfma_f32_16x16x32_bf16 v[72:75], %s, %s, %s" % (vr(40+4*t), vr(56+4*t), "0" if t == 0 else "v[72:75]"))
    a("s_mov_b32 s48, %s" % SCALE); a("s_mov_b32 s52, 0xffff0000")
    a("s_nop 5")
    a("v_cvt_pk_bf16_f32 v76, v72, v73"); a("v_cvt_pk_bf16_f32 v77, v74, v75")
    a("v_lshlrev_b32 v72, 16, v76"); a("v_and_b32 v73, s52, v76"); a("v_lshlrev_b32 v74, 16, v77"); a("v_and_b32 v75, s52, v77")
    for i in range(4): a("v_mul_f32 v%d, s48, v%d" % (72+i, 72+i))
    a("v_cvt_pk_bf16_f32 v76, v72, v73"); a("v_cvt_pk_bf16_f32 v77, v74, v75")
    a("v_lshlrev_b32 v72, 16, v76"); a("v_and_b32 v73, s52, v76"); a("v_lshlrev_b32 v74, 16, v77"); a("v_and_b32 v75, s52, v77")
    a("v_max3_f32 v76, v72, v73, v74"); a("v_max_f32 v76, v76, v75")
    allred_rows(76, 77, "v_max_f32")
    ex(0xf, 0)
    a("ds_write_b32 v23, v76")
    ex(-1)
    a("s_waitcnt lgkmcnt(0)")
    a("s_barrier")
    ST("b3")
    a("ds_read_b128 v[76:79], v24"); a("ds_read_b128 v[80:83], v24 offset:16"); a("ds_read_b32 v94, v88 offset:4")
    dma(37, 20, "s54")
    a("s_mov_b32 s48, %s" % LOG2E)
    a("s_waitcnt lgkmcnt(0)")
    a("v_max3_f32 v76, v76, v77, v78"); a("v_max3_f32 v80, v80, v81, v82"); a("v_max3_f32 v76, v76, v79, v83"); a("v_max_f32 v84, v76, v80")
    a("v_mul_f32 v85, s48, v84")
    a("v_readfirstlane_b32 s58, v94")
    for i in range(4): a("v_fma_f32 v%d, v%d, s48, -v85" % (72+i, 72+i))
    for i in range(4): a("v_exp_f32 v%d, v%d" % (72+i, 72+i))
    a("s_nop 0")
    a("v_cvt_pk_bf16_f32 v76, v72, v73"); a("v_cvt_pk_bf16_f32 v77, v74, v75")
    a("v_add_f32 v78, v72, v73"); a("v_add_f32 v79, v74, v75"); a("v_add_f32 v78, v78, v79")
    ex(0x000f000f)
    a("ds_write_b64 v22, v[76:77]")
    ex(-1)
    allred_rows(78, 79, "v_add_f32")
    ex(0xf, 0)
    a("ds_write_b32 v23, v78 offset:128")
    ex(-1)
    ST("psm")
    a("s_waitcnt vmcnt(3) lgkmcnt(0)")
    ST("v")
    a("s_barrier")
    ST("b4")
    for t in range(4):
        a("ds_read_b128 %s, v16 offset:%d" % (vr(56+4*t), 1152 + 64*t))
        a("ds_read_b64_tr_b16 %s, v21 offset:%d" % (vr(40+4*t, 2), t*8192))
        a("ds_read_b64_tr_b16 %s, v21 offset:%d" % (vr(42+4*t, 2), t*8192 + 1024))
    a("ds_read_b128 v[76:79], v24 offset:128"); a("ds_read_b128 v[80:83], v24 offset:144")
    for t in range(4):
        a("s_waitcnt lgkmcnt(%d)" % (0 if diag else 3*(3-t) + 2))
        a("v_mfma_f32_16x16x32_bf16 v[72:75], %s, %s, %s" % (vr(40+4*t), vr(56+4*t), "0" if t == 0 else "v[72:75]"))
    a("s_waitcnt lgkmcnt(0)")
    a("v_add_f32 v76, v76, v77"); a("v_add_f32 v78, v78, v79"); a("v_add_f32 v80, v80, v81"); a("v_add_f32 v82, v82, v83")
    a("v_add_f32 v76, v76, v78"); a("v_add_f32 v80, v80, v82"); a("v_add_f32 v85, v76, v80")
    a("s_nop 0")
    addtag(76, 72, 10)
    addtag(80, 84, 10, 2)
    a("v_mov_b32 v82, v10"); a("v_mov_b32 v83, v10")
    ex(0x000f000f)
    a("s_cmp_lg_u32 s58, 0"); a("s_cbranch_scc1 L_oglob")
    a("buffer_store_dwordx4 v[76:79], v25, s[32:35], s68 offen")
    ex(0xf, 0)
    a("buffer_store_dwordx4 v[80:83], v26, s[32:35], s69 offen")
    a("L_opubd:")
    ex(-1)
    ST("opub")
    a("L_opoll:")
    a("buffer_load_dwordx4 v[48:51], v28, s[32:35], s62 offen sc1")
    a("buffer_load_dwordx4 v[52:55], v28, s[32:35], s62 offen offset:256 sc1")
    a("buffer_load_dwordx4 v[40:43], v27, s[32:35], s61 offen sc1")
    a("buffer_load_dwordx4 v[44:47], v27, s[32:35], s61 offen offset:1024 sc1")
    a("s_add_u32 s70, s70, 1"); a("s_cmp_lt_u32 s70, 0x%x" % SPIN)
    a("s_cbranch_scc0 L_ook0")
    a("s_waitcnt vmcnt(0)")
    tagcheck([40, 44, 48, 52], 56, 57)
    a("v_cmp_ne_u32 vcc, 0, v56")
    a("s_cbranch_vccnz L_opoll")
    a("L_ook0:")
    a("s_waitcnt vmcnt(0)")
    ST("ook")
    for ct in range(4): a("ds_read_b64_tr_b16 %s, v%d" % (vr(60+2*ct, 2), 29+ct))
    untag(48, 2); untag(52, 2)
    a("v_max_f32 v56, v48, v52")
    untag(40, 8)
    dpp("v_max_f32", 56, 4); a("s_nop 1"); dpp("v_max_f32", 56, 8)
    allred_rows(56, 57, "v_max_f32")
    a("s_mov_b32 s48, %s" % LOG2E)
    a("v_sub_f32 v48, v48, v56"); a("v_sub_f32 v52, v52, v56")
    a("v_mul_f32 v48, s48, v48"); a("v_mul_f32 v52, s48, v52")
    a("v_exp_f32 v48, v48"); a("v_exp_f32 v52, v52")
    a("s_nop 0")
    a("v_mul_f32 v57, v48, v49"); a("v_fmac_f32 v57, v52, v53")
    for i in range(4): a("v_mul_f32 v%d, v48, v%d" % (40+i, 40+i))
    for i in range(4): a("v_fmac_f32 v%d, v52, v%d" % (40+i, 44+i))
    dpp("v_add_f32", 57, 4)
    a("v_permlane32_swap_b32 v40, v42"); a("v_permlane32_swap_b32 v41, v43")
    dpp("v_add_f32", 57, 8)
    a("v_add_f32 v40, v40, v42"); a("v_add_f32 v41, v41, v43")
    a("v_mov_b32 v58, v57"); a("s_nop 0")
    a("v_permlane16_swap_b32 v40, v41")
    a("v_permlane16_swap_b32 v57, v58")
    a("v_add_f32 v40, v40, v41"); a("v_add_f32 v57, v57, v58")
    a("v_mov_b32 v58, v57"); a("s_nop 0")
    dpp("v_add_f32", 40, 4)
    a("v_permlane32_swap_b32 v57, v58")
    a("v_add_f32 v57, v57, v58")
    dpp("v_add_f32", 40, 8)
    a("v_rcp_f32 v57, v57")
    a("s_nop 0")
    a("v_mul_f32 v40, v40, v57")
    a("s_nop 1")
    for i in range(4): a("v_mov_b32_dpp v%d, v40 quad_perm:[%d,%d,%d,%d] row_mask:0xf bank_mask:0xf" % (44+i, i, i, i, i))
    a("v_cvt_pk_bf16_f32 v48, v44, v45"); a("v_cvt_pk_bf16_f32 v49, v46, v47")
    a("s_waitcnt lgkmcnt(0)")
    a("s_nop 0")
    for ct in range(4): a("v_mfma_f32_16x16x16_bf16 %s, v[48:49], %s, 0" % (vr(68+4*ct), vr(60+2*ct, 2)))
    a("s_mov_b32 s64, 0xffff0000"); a("s_mov_b32 s65, 0"); a("s_mov_b32 s66, 0"); a("s_mov_b32 s67, 0xffff"); a("s_mov_b32 s68, 0"); a("s_mov_b32 s69, 0xffff0000")
    a("v_cndmask_b32 v68, v68, v72, s[64:65]")
    a("s_nop 0")
    a("v_cndmask_b32 v68, v68, v76, s[66:67]")
    a("v_cndmask_b32 v68, v68, v80, s[68:69]")
    a("ds_write_b32 v33, v68")
    a("s_waitcnt lgkmcnt(0)")
    a("s_barrier")
    a("ds_read_b128 v[40:43], v34")
    a("s_waitcnt lgkmcnt(0)")
    for ror in (2, 4, 8):
        for i in range(4): dpp("v_add_f32", 40+i, ror)
    addtag(44, 40, 10)
    ex(0x3, 0)
    a("buffer_store_dwordx4 v[44:47], v35, s[32:35], s71 offen sc1")
    ST("apub")
    dump_stamps("att")
    a("s_endpgm")
    a("L_oglob:")
    a("buffer_store_dwordx4 v[76:79], v25, s[32:35], s68 offen sc1")
    ex(0xf, 0)
    a("buffer_store_dwordx4 v[80:83], v26, s[32:35], s69 offen sc1")
    a("s_branch L_opubd")

    role[0] = "aux"
    a("L_aux2:")
    ST("a0")
    a("s_lshr_b32 s55, s2, 3")
    a("s_and_b32 s53, s55, 7")
    a("s_mov_b32 s71, 0xffff0000")
    a("v_lshlrev_b32 v9, 4, v0"); a("v_add_u32 v9, %d, v9" % XN_L)
    if o["pre"]:
        a("s_lshl_b32 s52, s51, 16"); a("s_lshl_b32 s48, s55, 11"); a("s_add_u32 s52, s52, s48"); a("s_add_u32 s52, s52, 0x%x" % O_OFF)
        a("v_lshlrev_b32 v2, 7, v0"); a("v_add_u32 v2, s52, v2")
        a("s_lshl_b32 s52, s51, 13"); a("s_lshl_b32 s48, s55, 8"); a("s_add_u32 s52, s52, s48")
        a("v_and_b32 v3, 1, v0"); a("v_lshlrev_b32 v3, 7, v3"); a("v_add_u32 v3, s52, v3")
        a("v_add_u32 v4, 0x%x, v3" % Q_OFF); a("v_add_u32 v3, 0x%x, v3" % H_OFF)
        a("v_cmp_gt_u32 vcc, 16, v0"); a("s_nop 1"); a("v_cndmask_b32 v2, v4, v2, vcc")
        a("v_cmp_gt_u32 vcc, 18, v0"); a("s_nop 1"); a("v_cndmask_b32 v2, v3, v2, vcc")
        a("s_lshl_b32 s52, s51, 11"); a("s_and_b32 s48, s55, 15"); a("s_lshl_b32 s48, s48, 7"); a("s_add_u32 s52, s52, s48"); a("s_add_u32 s52, s52, 0x%x" % ML_OFF)
        a("v_mov_b32 v3, s52")
        a("v_cmp_gt_u32 vcc, 20, v0"); a("s_nop 1"); a("v_cndmask_b32 v2, v3, v2, vcc")
        ex(0x1fffff, 0)
        a("buffer_load_dword v39, v2, s[32:35], 0 offen")
        ex(-1)
        a("s_waitcnt vmcnt(1)")
    else:
        a("s_waitcnt vmcnt(0)")
    ST("x")
    a("v_readfirstlane_b32 s57, v36")
    a("v_mov_b32 v88, %d" % TG_L)
    a("s_add_u32 s57, s57, 1"); a("s_and_b32 s59, s57, 0xff"); a("v_mov_b32 v10, s59")
    a("v_mov_b32 v11, 0")
    a("ds_write_b64 v88, v[10:11]")
    for i in range(4):
        a("v_lshlrev_b32 v%d, 16, v%d" % (16+2*i, 12+i)); a("v_and_b32 v%d, s71, v%d" % (17+2*i, 12+i))
    a("v_readfirstlane_b32 s52, v16")
    a("s_nop 1")
    for i in range(8): a("v_subrev_f32 v%d, s52, v%d" % (24+i, 16+i))
    a("v_add_f32 v32, v24, v25"); a("v_mul_f32 v33, v24, v24")
    a("v_fmac_f32 v33, v25, v25")
    for i in range(2, 8):
        a("v_add_f32 v32, v32, v%d" % (24+i)); a("v_fmac_f32 v33, v%d, v%d" % (24+i, 24+i))
    a("s_nop 0")
    for ror in (8, 4, 2, 1):
        dpp("v_add_f32", 32, ror); dpp("v_add_f32", 33, ror); a("s_nop 0")
    a("s_nop 0")
    a("v_permlane32_swap_b32 v32, v33"); a("v_add_f32 v32, v32, v33")
    a("v_mov_b32 v33, v32"); a("s_nop 1"); a("v_permlane16_swap_b32 v32, v33"); a("v_add_f32 v32, v32, v33")
    a("s_nop 0")
    a("v_readlane_b32 s64, v32, 0"); a("v_readlane_b32 s65, v32, 32")
    a("s_mov_b32 s48, 0x3b000000")
    a("v_mov_b32 v34, s64"); a("v_mov_b32 v35, s65")
    a("v_mul_f32 v34, s48, v34"); a("v_mul_f32 v35, s48, v35")
    a("v_fma_f32 v35, -v34, v34, v35"); a("v_add_f32 v34, s52, v34"); a("v_max_f32 v35, 0, v35")
    a("v_cvt_pk_bf16_f32 v34, v34, v35")
    a("v_and_b32 v35, s71, v34"); a("v_lshlrev_b32 v34, 16, v34")
    a("v_add_f32 v35, 0x3727c5ac, v35")
    a("v_cvt_pk_bf16_f32 v35, v35, v35"); a("v_and_b32 v35, s71, v35")
    a("v_sqrt_f32 v35, v35")
    for i in range(8): a("v_sub_f32 v%d, v%d, v34" % (24+i, 16+i))
    a("v_cvt_pk_bf16_f32 v35, v35, v35"); a("v_and_b32 v35, s71, v35"); a("v_rcp_f32 v35, v35")
    for i in range(4): a("v_cvt_pk_bf16_f32 v%d, v%d, v%d" % (12+i, 24+2*i, 25+2*i))
    for i in range(4):
        a("v_lshlrev_b32 v%d, 16, v%d" % (24+2*i, 12+i)); a("v_and_b32 v%d, s71, v%d" % (25+2*i, 12+i))
    for i in range(8): a("v_mul_f32 v%d, v%d, v35" % (24+i, 24+i))
    for i in range(4): a("v_cvt_pk_bf16_f32 v%d, v%d, v%d" % (12+i, 24+2*i, 25+2*i))
    a("ds_write_b128 v9, v[12:15]")
    a("s_waitcnt lgkmcnt(0)")
    ST("ln")
    a("s_barrier")
    a("s_lshr_b32 s52, s51, 1"); a("s_mul_i32 s61, s52, 448"); a("s_and_b32 s48, s51, 1"); a("s_lshl_b32 s52, s48, 8"); a("s_add_u32 s61, s61, s52")
    a("s_lshl_b32 s52, s48, 4"); a("s_sub_u32 s62, 64, s52")
    a("v_lshlrev_b32 v2, 4, v0"); a("v_and_b32 v2, 0x70, v2"); a("v_lshlrev_b32 v3, 1, v0"); a("v_and_b32 v3, 32, v3"); a("v_xor_b32 v2, v2, v3")
    a("v_lshrrev_b32 v3, 3, v0")
    a("v_mul_u32_u24 v4, 3584, v3"); a("v_add_u32 v4, v4, v2")
    a("s_add_u32 s52, s49, s48"); a("s_cmp_ge_u32 s52, 4"); a("s_cselect_b32 s68, 0x%x, 0" % OOB)
    a("v_add_u32 v4, s68, v4"); a("v_xor_b32 v6, 64, v4")
    a("v_lshl_or_b32 v7, v3, 10, v2"); a("v_xor_b32 v8, 64, v7")
    a("s_mul_i32 s50, s53, %d" % (64*3584)); a("s_lshl_b32 s52, s49, 7"); a("s_add_u32 s50, s50, s52"); a("s_lshl_b32 s52, s61, 1"); a("s_add_u32 s50, s50, s52")
    a("s_mov_b32 s26, %d" % (512*3584)); a("s_mov_b32 s27, 0x20000")
    a("s_mov_b32 m0, %d" % W1_L)
    a("s_load_dwordx2 s[28:29], s[0:1], 64")
    a("s_load_dwordx2 s[36:37], s[0:1], 56")
    a("s_load_dwordx2 s[40:41], s[0:1], 72")
    a("s_load_dwordx2 s[44:45], s[0:1], 80")
    for i in range(8):
        dma(4 if i % 2 == 0 else 6, 24, "s50")
        if i < 7:
            a("s_add_u32 s50, s50, %d" % (8*3584)); a("s_add_u32 m0, m0, 0x400"); a("s_nop 0")
    a("s_movk_i32 s60, 0xff"); a("s_mov_b32 s63, 0xffffff00"); a("s_mov_b32 s70, 0")
    a("v_lshrrev_b32 v5, 4, v0"); a("v_and_b32 v1, 15, v0")
    a("v_lshrrev_b32 v2, 2, v1"); a("v_and_b32 v3, 3, v0")
    a("v_lshl_add_u32 v16, v5, 3, v2"); a("v_lshlrev_b32 v16, 7, v16")
    a("v_lshlrev_b32 v17, 3, v3"); a("v_and_b32 v18, 2, v2"); a("v_lshlrev_b32 v18, 4, v18"); a("v_and_b32 v19, 1, v5"); a("v_lshlrev_b32 v19, 6, v19")
    a("v_or_b32 v18, v18, v19"); a("v_xor_b32 v17, v17, v18"); a("v_or_b32 v16, v16, v17")
    a("v_add_u32 v16, %d, v16" % W1_L)
    a("v_xor_b32 v17, 32, v16"); a("v_xor_b32 v18, 64, v16"); a("v_xor_b32 v19, 0x60, v16")
    a("s_lshl_b32 s52, s53, 7"); a("s_add_u32 s52, s52, %d" % XN_L); a("v_lshl_add_u32 v20, v5, 4, s52")
    a("v_lshl_add_u32 v21, v5, 4, s68")
    a("s_lshl_b32 s66, s51, 13"); a("s_add_u32 s66, s66, 0x%x" % H_OFF)
    a("s_lshl_b32 s52, s53, 10"); a("s_add_u32 s67, s66, s52"); a("s_lshl_b32 s52, s49, 8"); a("s_add_u32 s67, s67, s52")
    a("s_mov_b32 s30, %d" % (512*3584)); a("s_mov_b32 s31, 0x20000")
    a("s_mov_b32 s38, 3584"); a("s_mov_b32 s39, 0x20000")
    a("s_mov_b32 s42, 1024"); a("s_mov_b32 s43, 0x20000")
    a("s_mov_b32 s46, 1024"); a("s_mov_b32 s47, 0x20000")
    a("ds_read_b128 v[56:59], v20"); a("ds_read_b128 v[60:63], v20 offset:64")
    a("s_waitcnt vmcnt(0) lgkmcnt(0)")
    ST("w1")
    def tile_gemv(dst=24):
        for ct in range(4):
            for t in range(2):
                a("ds_read_b64_tr_b16 %s, v%d offset:%d" % (vr(24+8*ct+4*t, 2), 16+ct, t*4096))
                a("ds_read_b64_tr_b16 %s, v%d offset:%d" % (vr(26+8*ct+4*t, 2), 16+ct, t*4096 + 512))
            if ct == 1: a("s_waitcnt lgkmcnt(4)")
        for ct in range(4):
            a("s_waitcnt lgkmcnt(%d)" % (0 if diag else 4*(3-ct)))
            a("v_mfma_f32_16x16x32_bf16 %s, %s, v[56:59], 0" % (vr(64+4*ct), vr(24+8*ct)))
            a("v_mfma_f32_16x16x32_bf16 %s, %s, v[60:63], %s" % (vr(64+4*ct), vr(28+8*ct), vr(64+4*ct)))
        a("s_nop 1")
        for ct in range(4):
            if ct == 3: a("s_nop 3")
            addtag(dst+4*ct, 64+4*ct, 10)
    tile_gemv(40)
    a("s_mul_i32 s52, s62, s49"); a("s_add_u32 s69, s61, s52")
    a("v_lshl_add_u32 v11, v1, 2, v5")
    a("v_add_lshl_u32 v22, v11, s69, 1")
    ST("hrdy")
    a("buffer_load_ushort v81, v22, s[36:39], 0 offen")
    a("v_and_b32 v23, 1, v0"); a("v_lshl_add_u32 v23, v23, 2, v5")
    a("s_lshl_b32 s48, s51, 6"); a("s_lshl_b32 s50, s55, 3"); a("s_add_u32 s48, s48, s50")
    a("v_add_lshl_u32 v23, v23, s48, 1")
    a("buffer_load_ushort v82, v23, s[40:43], 0 offen")
    a("buffer_load_ushort v83, v23, s[4:7], 0 offen")
    a("v_lshlrev_b32 v80, 4, v1"); a("v_lshl_or_b32 v80, v5, 10, v80")
    a("s_lshl_b32 s52, s52, 2"); a("s_add_u32 s64, s66, s52"); a("s_add_u32 s65, s64, 4096")
    a("s_lshl_b32 s50, s69, 10"); a("s_lshl_b32 s52, s53, 7"); a("s_add_u32 s50, s50, s52")
    a("s_mov_b32 m0, %d" % W2_L)
    a("s_barrier")
    a("ds_read_b32 v24, v88 offset:4")
    a("s_waitcnt lgkmcnt(0)")
    a("v_readfirstlane_b32 s58, v24")
    ex(0x00010001)
    a("s_cmp_lg_u32 s58, 0"); a("s_cbranch_scc1 L_hglob")
    for ct in range(4): a("buffer_store_dwordx4 %s, v21, s[32:35], s67 offen offset:%d" % (vr(40+4*ct), 64*ct))
    a("L_hpubd:")
    ex(-1)
    ST("hpub")
    a("s_cmp_eq_u32 s62, 64"); a("s_cselect_b32 s68, 0, 0x%x" % OOB)
    for i in range(8):
        if i == 6:
            a("v_add_u32 v7, s68, v7"); a("v_add_u32 v8, s68, v8")
        dma(7 if i % 2 == 0 else 8, 28, "s50")
        if i < 7:
            a("s_add_u32 s50, s50, 8192"); a("s_add_u32 m0, m0, 0x400"); a("s_nop 0")
    for r in (16, 17, 18, 19): a("v_add_u32 v%d, %d, v%d" % (r, W2_L - W1_L, r))
    a("v_lshlrev_b32 v84, 1, v11"); a("v_add_u32 v84, %d, v84" % HS_L)
    a("v_lshlrev_b32 v85, 4, v5"); a("v_add_u32 v85, %d, v85" % HS_L)
    a("v_lshrrev_b32 v86, 1, v5"); a("v_lshlrev_b32 v86, 10, v86"); a("v_and_b32 v87, 1, v5"); a("v_lshl_or_b32 v86, v87, 4, v86")
    a("s_lshl_b32 s52, s51, 2"); a("s_add_u32 s52, s52, s49"); a("s_lshl_b32 s66, s52, 5"); a("s_lshl_b32 s52, s53, 13"); a("s_add_u32 s66, s66, s52")
    a("s_add_u32 s66, s66, 0x%x" % F3_OFF); a("s_add_u32 s67, s66, 4096")
    a("s_barrier")
    a("s_barrier")
    ST("b4")
    a("v_cmp_gt_u32 vcc, s62, v11")
    a("s_mov_b64 s[68:69], vcc")
    a("L_hpoll:")
    a("buffer_load_dwordx4 v[24:27], v80, s[32:35], s64 offen sc1")
    a("buffer_load_dwordx4 v[28:31], v80, s[32:35], s65 offen sc1")
    a("s_add_u32 s70, s70, 1"); a("s_cmp_lt_u32 s70, 0x%x" % SPIN)
    a("s_cbranch_scc0 L_hok")
    a("s_waitcnt vmcnt(0)")
    tagcheck([24, 28], 32, 33)
    a("v_cmp_ne_u32 vcc, 0, v32")
    a("s_and_b64 vcc, vcc, s[68:69]")
    a("s_cbranch_vccnz L_hpoll")
    a("L_hok:")
    a("s_waitcnt vmcnt(0)")
    ST("hok")
    untag(24, 8)
    for i in range(4): a("v_add_f32 v%d, v%d, v%d" % (24+i, 24+i, 28+i))
    a("s_nop 1")
    rscatter4(24)
    a("v_cvt_pk_bf16_f32 v24, v24, v24"); a("v_and_b32 v24, s71, v24")
    a("v_lshlrev_b32 v81, 16, v81"); a("v_add_f32 v24, v24, v81")
    a("v_cvt_pk_bf16_f32 v24, v24, v24"); a("v_and_b32 v24, s71, v24")
    a("v_mul_f32 v25, v24, v24"); a("v_mov_b32 v26, 0x3d372713"); a("v_fma_f32 v25, v25, v26, 1.0"); a("v_mul_f32 v25, v25, v24")
    a("v_mul_f32 v25, 0xc0135761, v25")
    a("v_exp_f32 v25, v25"); a("s_nop 0"); a("v_add_f32 v25, 1.0, v25"); a("v_rcp_f32 v25, v25"); a("s_nop 0"); a("v_mul_f32 v24, v24, v25")
    a("v_cvt_pk_bf16_f32 v24, v24, v24")
    a("v_cndmask_b32 v24, 0, v24, s[68:69]")
    a("ds_write_b16 v84, v24")
    a("s_waitcnt lgkmcnt(0)")
    a("ds_read_b128 v[56:59], v85"); a("ds_read_b128 v[60:63], v85 offset:64")
    tile_gemv()
    ex(0x00010001)
    a("buffer_store_dwordx4 v[24:27], v86, s[32:35], s66 offen sc1")
    a("buffer_store_dwordx4 v[28:31], v86, s[32:35], s66 offen offset:2048 sc1")
    a("buffer_store_dwordx4 v[32:35], v86, s[32:35], s67 offen sc1")
    a("buffer_store_dwordx4 v[36:39], v86, s[32:35], s67 offen offset:2048 sc1")
    ex(-1)
    ST("fpub")
    a("s_barrier")
    a("s_cmp_ge_u32 s2, 64"); a("s_cbranch_scc1 L_auxend")
    a("s_lshl_b32 s52, s51, 13"); a("s_lshl_b32 s48, s55, 10"); a("s_add_u32 s52, s52, s48")
    a("s_add_u32 s64, s52, 0x%x" % F3_OFF); a("s_add_u32 s65, s52, 0x%x" % A3_OFF)
    a("v_lshlrev_b32 v80, 4, v0")
    def final_gather(lbl, soff):
        a("%s:" % lbl)
        a("buffer_load_dwordx4 v[52:55], v80, s[32:35], %s offen sc1" % soff)
        a("s_add_u32 s70, s70, 1"); a("s_cmp_lt_u32 s70, 0x%x" % SPIN)
        a("s_cbranch_scc0 %s_ok" % lbl)
        a("s_waitcnt vmcnt(0)")
        tagcheck([52], 56, 57)
        a("v_cmp_ne_u32 vcc, 0, v56")
        a("s_cbranch_vccnz %s" % lbl)
        a("%s_ok:" % lbl)
        a("s_waitcnt vmcnt(0)")
        untag(52)
        a("s_nop 1")
        rscatter4(52)
        for ror in (2, 4, 8):
            a("s_nop 1"); dpp("v_add_f32", 52, ror)
        a("v_cvt_pk_bf16_f32 v52, v52, v52"); a("v_and_b32 v52, s71, v52")
    final_gather("L_fpoll", "s64")
    ST("fok")
    a("v_lshlrev_b32 v82, 16, v82"); a("v_add_f32 v82, v52, v82"); a("v_cvt_pk_bf16_f32 v82, v82, v82"); a("v_and_b32 v82, s71, v82")
    a("v_lshlrev_b32 v83, 16, v83")
    final_gather("L_apoll", "s65")
    a("v_add_f32 v52, v83, v52"); a("v_cvt_pk_bf16_f32 v52, v52, v52"); a("v_and_b32 v52, s71, v52")
    a("v_add_f32 v52, v52, v82"); a("v_cvt_pk_bf16_f32 v52, v52, v52")
    ex(0x00030003)
    a("buffer_store_short v52, v23, s[44:47], 0 offen sc1")
    a("s_cmp_lg_u32 s2, 0"); a("s_cbranch_scc1 L_auxend")
    ex(1, 0)
    a("v_mov_b32 v53, s57"); a("v_mov_b32 v54, 0")
    a("buffer_store_dword v53, v54, s[32:35], 0 offen sc1")
    a("L_auxend:")
    ST("end")
    dump_stamps("aux")
    a("L_end:")
    a("s_endpgm")
    a("L_hglob:")
    for ct in range(4): a("buffer_store_dwordx4 %s, v21, s[32:35], s67 offen offset:%d sc1" % (vr(40+4*ct), 64*ct))
    a("s_branch L_hpubd")
    a("L_codeend:")
    text = a.text()
    hdr = "; fused LN + GQA decode attention (last 4096 keys) + GELU FFN, one launch, 256 workgroups x 9 waves\n"
    src = kernel_file(text, 256, 576, LDS_BYTES, vgpr=96, sgpr=102, header=hdr)
    open(path, "w").write(src)
    return names, lint.lint(text)

if __name__ == "__main__":
    names, probs = gen(sys.argv[1] if len(sys.argv) > 1 else "k.s", diag=(len(sys.argv) > 2 and sys.argv[2] == "diag"))
    for p in probs: print(p)
```

```python
import sys
from asmlib import *
import lint

WQ_L, K_L, V_L, WO_L, W1_L, W2_L = 0, 16384, 49152, 81920, 98304, 106496
XN_L = 114688
QS_L = XN_L + 1024
PS_L = QS_L + 1152
MX_L = PS_L + 1152
R_L = MX_L + 256
HS_L = R_L + 2304
TG_L = HS_L + 128
FS_L = TG_L + 128
LDS_BYTES = 122880
Q_OFF, H_OFF, ML_OFF, AF_OFF, O_OFF = 0x10000, 0x20000, 0x30000, 0x40000, 0x80000
QG_DELTA = 0x60000
G2_DELTA = 0x100000
WS_SIZE = 0x200000
ST_OFF = 0x1000000
OOB = 0x40000000
LOG2E = "0x3fb8aa3b"
SCALE = "0x3db504f3"
SPIN = 0x80000

DEF = dict(pfwgs=16, pre=False, dirty=False, force_remote=False, gper=16, prio=True,
           s0="k0",
           s0b="w:wq0 k1", s1b="k3",
           s1="k2",
           s2="B S2 w:k1 v0 w:k2 v1 w:k3 st:k3 poll kf w:v0 v2 pollB w:v1 v3",
           s3="", s4="wo0",
           s5="",
           s6="wo1",
           w1at="bk", w2at="b2", bk=True, bo=True, bp=True, lpoll="nt", rpoll="nt", op1="nt", op2="nt", hp1="nt", hp2="nt", prefl="", preq=False, rot=True, rotwo=True, skipq=True, dsmax=True, onesl=True, outsc="", b5=True, b6=True, bq=False, s7="", tlb="", aflay="P", qg_always=False, fin=0, fmask=False, fsleep=0, fsleep2=0, wsbase=0, rotwq=False, amp=None, dbgsel=None, ampwg=0)

class VM:
    def __init__(self, a): self.a = a; self.q = []
    def issue(self, name): self.q.append(name)
    def wait(self, name, extra=""):
        n = len(self.q) - 1 - max(i for i, x in enumerate(self.q) if x == name)
        self.a("s_waitcnt vmcnt(%d)%s" % (n, extra))
    def drain(self): self.q = []

def gen(path, diag=False, pf=True, nt=True, opts=None):
    o = dict(DEF); o.update(opts or {})
    a = Asm()
    NT = " nt" if nt else ""
    names = {"att": [], "aux": []}
    role = ["att"]
    lite = (diag == "lite")
    if diag and not lite and not o.get("only"): o["only"] = ("a0","wq","b1","qpub","k3","p1","qok","b3","psm","b4","opub","ook","apub","v3","oack","bo","opi","woi","op1")
    def ST(name):
        if not diag: return
        if o.get("only") and role[0] == "att" and name not in o["only"]: return
        if lite and (name not in ("end", "apub") or (role[0] == "aux" and name == "apub")): return
        n = len(names[role[0]]); assert n < 14
        a("s_memrealtime s[%d:%d]" % (74 + 2*n, 75 + 2*n)); names[role[0]].append(name)
    def dump_stamps(tag):
        if not diag: return
        n = len(names[role[0]])
        if o["amp"]:
            r, nm, amp = o["amp"]
            if r != tag: return
            lbl = a.label("L_amp")
            a("s_cmp_lg_u32 s2, %d" % o["ampwg"]); a("s_cbranch_scc1 %s_done" % lbl)
            a("s_waitcnt lgkmcnt(0)")
            if nm.startswith("skew"):
                a("s_mov_b64 exec, -1"); a("s_mov_b32 s34, 0x20000000")
                a("v_lshlrev_b32 v1, 4, v0"); a("s_mov_b32 s64, 0x%x" % ST_OFF)
                a("buffer_load_dwordx4 v[4:7], v1, s[32:35], s64 offen sc1"); a("s_waitcnt vmcnt(0)")
                for i in range(4): a("v_subrev_u32 v%d, s72, v%d" % (4+i, 4+i))
                a("v_max_i32 v8, v4, v5"); a("v_max3_i32 v8, v8, v6, v7"); a("v_min_i32 v9, v4, v5"); a("v_min3_i32 v9, v9, v6, v7")
                a("s_mov_b32 s64, 0x80000000"); a("s_mov_b32 s65, 0x7fffffff"); a("s_mov_b32 s66, 0")
                a("%s_r:" % lbl)
                a("s_nop 3"); a("v_readlane_b32 s67, v8, s66"); a("s_max_i32 s64, s64, s67"); a("v_readlane_b32 s67, v9, s66"); a("s_min_i32 s65, s65, s67")
                a("s_add_u32 s66, s66, 1"); a("s_cmp_lt_u32 s66, 64"); a("s_cbranch_scc1 %s_r" % lbl)
                if nm == "skew": a("s_sub_u32 s64, s64, s65")
                elif nm == "skew0": a("s_sub_u32 s64, 0, s65")
                elif nm == "skewend": a("s_sub_u32 s64, s74, s72"); a("s_sub_u32 s64, s64, s65")
            else:
                k = names[role[0]].index(nm)
                a("s_sub_u32 s64, s%d, s72" % (74 + 2*k))
            a("s_mul_i32 s64, s64, %d" % amp)
            a("s_memrealtime s[66:67]"); a("s_waitcnt lgkmcnt(0)"); a("s_mov_b32 s65, s66"); a("s_min_u32 s64, s64, 50000")
            a("%s:" % lbl)
            a("s_memrealtime s[66:67]"); a("s_waitcnt lgkmcnt(0)"); a("s_sub_u32 s66, s66, s65"); a("s_cmp_lt_u32 s66, s64"); a("s_cbranch_scc1 %s" % lbl)
            a("%s_done:" % lbl)
            return
        a("s_mov_b64 exec, -1")
        a("s_waitcnt vmcnt(0) lgkmcnt(0)")
        a("s_mov_b32 s34, 0x20000000")
        a("s_mul_i32 s64, s2, 9"); a("s_add_u32 s64, s64, %s" % ("s3" if tag == "att" else "8")); a("s_lshl_b32 s64, s64, 7"); a("s_add_u32 s64, s64, 0x%x" % ST_OFF)
        a("v_mov_b32 v1, 0")
        a("v_mov_b32 v2, s72"); a("buffer_store_dword v2, v1, s[32:35], s64 offen")
        for i in range(n):
            a("v_mov_b32 v%d, s%d" % (3+i, 74 + 2*i)); a("buffer_store_dword v%d, v1, s[32:35], s64 offen offset:%d" % (3+i, 4 + 4*i))
        a("v_mov_b32 v20, s70"); a("buffer_store_dword v20, v1, s[32:35], s64 offen offset:%d" % (4*31))
        a("v_mov_b32 v21, s42"); a("buffer_store_dword v21, v1, s[32:35], s64 offen offset:%d" % (4*29))
        a("v_mov_b32 v22, s43"); a("buffer_store_dword v22, v1, s[32:35], s64 offen offset:%d" % (4*30))
    def lg(n): a("s_waitcnt lgkmcnt(%d)" % (0 if (diag and not lite) else n))
    def dma(vaddr, srd, soff, imm=0):
        a("buffer_load_dwordx4 v%d, s[%d:%d], %s offen%s%s lds" % (vaddr, srd, srd+3, soff, (" offset:%d" % imm) if imm else "", NT))
    def vr(i, n=4): return "v[%d:%d]" % (i, i+n-1)
    def ex(lo, hi=None):
        if lo == -1: a("s_mov_b64 exec, -1"); return
        if role[0] == "att" and hi is None and lo == 0x000f000f: a("s_mov_b64 exec, s[28:29]"); return
        if role[0] == "att" and hi is None and lo == 0x00010001: a("s_mov_b64 exec, s[30:31]"); return
        hi = lo if hi is None else hi
        if hi == 0 and lo <= 64: a("s_mov_b64 exec, %d" % lo); return
        a("s_mov_b32 exec_lo, 0x%x" % lo); a("s_mov_b32 exec_hi, %s" % ("exec_lo" if hi == lo else "0x%x" % hi))
    def tagcheck(grans, acc, t1, mask=True):
        first = True
        for gq in grans:
            if first:
                a("v_bitop3_b32 v%d, v%d, v%d, s59 bitop3:0x7e" % (acc, gq, gq+1))
                a("v_bitop3_b32 v%d, v%d, v%d, s59 bitop3:0x7e" % (t1, gq+2, gq+3))
                if len(grans) == 1: a("v_or_b32 v%d, v%d, v%d" % (acc, acc, t1))
                else: pend = t1
                first = False
            else:
                a("v_bitop3_b32 v%d, v%d, v%d, s59 bitop3:0x7e" % (t1+1, gq, gq+1))
                if pend is not None:
                    a("v_or3_b32 v%d, v%d, v%d, v%d" % (acc, acc, pend, t1+1));
                    a("v_bitop3_b32 v%d, v%d, v%d, s59 bitop3:0x7e" % (t1, gq+2, gq+3)); pend = t1
                else: raise
        if len(grans) > 1: a("v_or_b32 v%d, v%d, v%d" % (acc, acc, pend))
        if mask: a("v_and_b32 v%d, s60, v%d" % (acc, acc))
    def untag(r0, n=4):
        for i in range(n): a("v_and_b32 v%d, s63, v%d" % (r0+i, r0+i))
    def addtag(dst, src, vT, n=4):
        for i in range(n): a("v_and_or_b32 v%d, v%d, s63, v%d" % (dst+i, src+i, vT))
    def rscatter4(r, op="v_add_f32"):
        a("v_permlane32_swap_b32 v%d, v%d" % (r, r+2)); a("v_permlane32_swap_b32 v%d, v%d" % (r+1, r+3))
        a("%s v%d, v%d, v%d" % (op, r, r, r+2)); a("%s v%d, v%d, v%d" % (op, r+1, r+1, r+3))
        a("s_nop 1")
        a("v_permlane16_swap_b32 v%d, v%d" % (r, r+1))
        a("%s v%d, v%d, v%d" % (op, r, r, r+1))
    def allred_rows(r, t, op):
        a("v_mov_b32 v%d, v%d" % (t, r)); a("s_nop 1"); a("v_permlane16_swap_b32 v%d, v%d" % (r, t)); a("%s v%d, v%d, v%d" % (op, r, r, t))
        a("v_mov_b32 v%d, v%d" % (t, r)); a("s_nop 1"); a("v_permlane32_swap_b32 v%d, v%d" % (r, t)); a("%s v%d, v%d, v%d" % (op, r, r, t))
    def dpp(op, d, ror):
        a("%s_dpp v%d, v%d, v%d row_ror:%d row_mask:0xf bank_mask:0xf" % (op, d, d, d, ror))

    if diag: a("s_memrealtime s[72:73]")
    a("s_load_dwordx2 s[4:5], s[0:1], 0")
    a("s_load_dwordx2 s[8:9], s[0:1], 24")
    a("s_load_dwordx2 s[12:13], s[0:1], 8")
    a("s_load_dwordx2 s[32:33], s[0:1], 96")
    a("v_lshrrev_b32 v1, 6, v0")
    a("v_and_b32 v0, 63, v0")
    a("s_lshr_b32 s48, s2, 8")
    a("v_readfirstlane_b32 s3, v1")
    a("s_cbranch_scc1 L_end")
    a("s_lshr_b32 s49, s2, 6")
    a("s_and_b32 s51, s2, 7")
    a("s_sub_u32 s3, s3, 1")
    a("s_cbranch_scc0 L_att0")
    a("s_movk_i32 s6, 1024"); a("s_mov_b32 s7, 0x20000")
    a("v_lshlrev_b32 v1, 4, v0")
    a("s_waitcnt lgkmcnt(0)")
    a("buffer_load_dwordx4 v[12:15], v1, s[4:7], 0 offen")
    a("s_load_dwordx2 s[24:25], s[0:1], 48")
    a("s_branch L_aux")
    a("L_att0:")
    a("v_lshlrev_b32 v2, 4, v0"); a("v_and_b32 v2, 0x70, v2")
    a("v_lshlrev_b32 v3, 1, v0"); a("v_and_b32 v3, 32, v3"); a("v_xor_b32 v2, v2, v3")
    a("v_lshrrev_b32 v3, 3, v0"); a("v_lshl_or_b32 v2, v3, 13, v2"); a("v_xor_b32 v4, 64, v2")
    a("s_lshl_b32 s50, s49, 20"); a("s_lshl_b32 s52, s51, 10"); a("s_add_u32 s50, s50, s52")
    a("s_bfe_u32 s53, s2, 0x30003")
    a("s_lshl_b32 s52, s53, 7"); a("s_add_u32 s50, s50, s52")
    a("s_lshl_b32 s52, s3, 17"); a("s_add_u32 s50, s50, s52"); a("s_add_u32 s54, s50, 0x10000")
    a("s_lshl_b32 m0, s3, 11")
    a("s_mov_b32 s10, 0x400000"); a("s_mov_b32 s11, 0x20000")
    a("s_waitcnt lgkmcnt(0)")
    vm = VM(a)
    dma(2, 8, "s50"); vm.issue("wq0")
    a("s_add_u32 m0, m0, 0x400"); a("s_nop 0")
    dma(4, 8, "s54"); vm.issue("wq1")
    a("L_entry_end:")
    role[0] = "att"
    a("s_load_dwordx2 s[16:17], s[0:1], 16")
    a("s_load_dwordx2 s[20:21], s[0:1], 32")
    if not o.get("ackst"): ST("a0")
    a("v_lshrrev_b32 v5, 4, v0")
    a("v_and_b32 v1, 15, v0")
    a("v_xor_b32 v6, v1, v5"); a("v_lshlrev_b32 v6, 4, v6"); a("v_lshl_or_b32 v6, v5, 8, v6")
    a("s_lshr_b32 s55, s2, 3")
    a("s_lshl_b32 s56, s51, 24"); a("s_lshl_b32 s52, s55, 15"); a("s_add_u32 s56, s56, s52")
    a("s_lshl_b32 s52, s3, 12"); a("s_add_u32 s56, s56, s52"); a("s_add_u32 s56, s56, 0x%x" % (61440*256))
    a("s_add_u32 s64, s52, %d" % K_L); a("s_add_u32 s65, s52, %d" % V_L)
    a("s_mov_b32 s14, 0x8000000"); a("s_mov_b32 s15, s11")
    KV = [6, 7, 38, 39]; VV = [8, 9, 86, 87]
    def piece(i):
        if i == 0: a("s_lshl_b32 s36, s2, 10") if o["rot"] else a("s_mov_b32 s36, 0")
        else: a("s_add_u32 s%d, s%d, 0x400" % (36+i, 35+i))
        a("s_and_b32 s%d, s%d, 0xc00" % (36+i, 36+i))
        a("s_add_u32 s%d, s56, s%d" % (24+i, 36+i)); a("s_lshr_b32 s52, s%d, 4" % (36+i))
        a("v_xor_b32 v%d, s52, v6" % (KV[i] if i else 95))
    piece(0)
    pieces_done = [1]
    def need_piece(i):
        while pieces_done[0] <= i: piece(pieces_done[0]); pieces_done[0] += 1
    cur_m0 = [None]
    def setm0(tag):
        if cur_m0[0] == tag: return
        src = {"wo0": "s66", "wo1": "s58"}[tag]
        a("s_mov_b32 m0, %s" % src); a("s_nop 0"); cur_m0[0] = tag
    def step(item):
        if item.startswith("w:"): vm.wait(item[2:])
        elif item[0] == "k" and item[1].isdigit():
            i = int(item[1]); need_piece(i); a("s_add_u32 m0, s64, s%d" % (36+i)); a("s_nop 0"); cur_m0[0] = None
            dma(KV[i] if i else 95, 12, "s%d" % (24+i)); vm.issue(item)
        elif item[0] == "v" and item[1].isdigit():
            i = int(item[1]); a("s_add_u32 m0, s65, s%d" % (36+i)); a("s_nop 0"); cur_m0[0] = None
            dma(VV[i], 16, "s%d" % (24+i)); vm.issue(item)
        elif item == "wo0": setm0("wo0"); dma(36, 20, "s50"); vm.issue(item)
        elif item == "wo1": setm0("wo1"); dma(37, 20, "s54"); vm.issue(item)
        elif item == "poll": a("buffer_load_dwordx4 v[76:79], v14, s[32:35], s67 offen %s" % o["lpoll"]); vm.issue(item)
        elif item == "pollB": a("buffer_load_dwordx4 v[96:99], v14, s[32:35], s67 offen %s" % o["rpoll"]); vm.issue(item)
        elif item == "pollC": a("buffer_load_dwordx4 v[100:103], v14, s[32:35], s67 offen %s" % o["rpoll"]); vm.issue(item)
        elif item == "kf":
            vm.wait("k3")
            for t in range(4): a("ds_read_b128 %s, v%d" % (vr(40+4*t), 17+t))
        elif item == "B": a("s_barrier")
        elif item == "S2": setup2()
        elif item.startswith("st:"): ST(item[3:])
        else: raise Exception(item)
    def setup2():
        a("v_lshlrev_b32 v60, 3, v3"); a("v_and_b32 v62, 1, v5")
        a("v_lshlrev_b32 v66, 5, v2"); a("v_lshl_or_b32 v67, v62, 7, v66"); a("v_xor_b32 v67, v67, v60")
        a("s_lshl_b32 s61, s3, 5"); a("v_xor_b32 v67, s61, v67"); a("v_or_b32 v21, v21, v67"); a("v_add_u32 v21, %d, v21" % V_L)
        a("s_lshl_b32 s48, s3, 11"); a("s_add_u32 s66, s48, %d" % WO_L); a("s_add_u32 s58, s66, 0x400")
        a("v_lshl_add_u32 v29, v2, 2, v5"); a("v_lshlrev_b32 v29, 7, v29")
        a("v_or3_b32 v29, v29, v66, v60"); a("v_add_u32 v29, s66, v29")
        a("v_xor_b32 v30, 32, v29"); a("v_xor_b32 v31, 64, v29"); a("v_xor_b32 v32, 0x60, v29")
        a("s_lshr_b32 s52, s3, 1"); a("s_mul_i32 s52, s52, 288"); a("s_and_b32 s47, s3, 1"); a("s_lshl_b32 s47, s47, 7")
        a("s_add_u32 s52, s52, s47"); a("s_add_u32 s52, s52, %d" % QS_L)
        a("v_lshl_add_u32 v15, v1, 2, v5"); a("v_lshl_add_u32 v15, v15, 1, s52")
        a("v_mul_u32_u24 v65, 288, v3")
        a("v_lshl_add_u32 v16, v5, 4, v65"); a("v_add_u32 v16, %d, v16" % QS_L)
        a("s_add_u32 s52, s61, %d" % PS_L); a("v_lshl_add_u32 v22, v5, 3, v65"); a("v_add_u32 v22, s52, v22")
        if o["dsmax"] and o["onesl"]:
            a("v_lshlrev_b32 v24, 2, v3"); a("v_add_u32 v24, %d, v24" % MX_L)
        else:
            assert not o["dsmax"] and not o["onesl"]
            a("v_lshlrev_b32 v24, 5, v3"); a("v_add_u32 v24, %d, v24" % MX_L)
            a("s_lshl_b32 s52, s3, 2"); a("v_add_u32 v23, s52, v24")
        if o["onesl"]:
            for i in range(4): a("v_mov_b32 v%d, 0x3f803f80" % (108+i))
        a("v_xor_b32 v17, v1, v5"); a("v_lshlrev_b32 v17, 4, v17"); a("v_lshl_or_b32 v17, v1, 8, v17"); a("v_add_u32 v17, s64, v17")
        a("v_xor_b32 v18, 64, v17"); a("v_xor_b32 v19, 0x80, v17"); a("v_xor_b32 v20, 0xc0, v17")
        a("v_lshlrev_b32 v25, 14, v3"); a("v_lshl_or_b32 v25, v5, 4, v25")
        if o["onesl"]: a("v_lshlrev_b32 v26, 9, v3")
        else:
            a("s_cmp_ge_u32 s3, 1"); a("s_cselect_b32 s52, 0x%x, 0" % OOB)
            a("v_lshl_add_u32 v26, v3, 9, s52")
        a("v_lshlrev_b32 v27, 4, v0")
        a("v_lshlrev_b32 v28, 2, v0"); a("v_and_b32 v28, 0xf0, v28")
        a("v_and_b32 v36, 0x70, v27"); a("v_and_b32 v66, 32, v0"); a("v_xor_b32 v36, v36, v66")
        a("v_lshrrev_b32 v66, 3, v0"); a("v_lshl_or_b32 v36, v66, 10, v36"); a("v_xor_b32 v37, 64, v36")
        a("s_lshl_b32 s52, s3, 8"); a("s_add_u32 s52, s52, %d" % R_L); a("v_lshl_add_u32 v33, v0, 2, s52")
        a("s_lshl_b32 s52, s51, 16"); a("s_add_u32 s52, s52, s48"); a("s_add_u32 s52, s52, 0x%x" % O_OFF)
        a("s_lshl_b32 s44, s55, 6"); a("s_add_u32 s44, s44, s52")
        a("s_lshl_b32 s61, s49, 14"); a("s_add_u32 s61, s61, s52")
        a("s_lshl_b32 s52, s51, 11"); a("s_add_u32 s52, s52, 0x%x" % ML_OFF)
        a("s_lshl_b32 s45, s55, 4"); a("s_add_u32 s45, s45, s52")
        a("s_lshl_b32 s62, s49, 9"); a("s_add_u32 s62, s62, s52")
        a("s_lshl_b32 s52, s51, 2"); a("s_add_u32 s52, s52, s49")
        a("s_lshl_b32 s50, s52, 17"); a("s_lshl_b32 s48, s3, 14"); a("s_add_u32 s50, s50, s48")
        a("s_lshl_b32 s48, s53, 7"); a("s_add_u32 s50, s50, s48"); a("s_add_u32 s54, s50, 8192")
        a("s_mov_b32 s40, 0x11111111"); a("s_mov_b32 s41, s40")
        if o["rotwo"]:
            a("s_and_b32 s48, s51, 1"); a("s_lshl_b32 s52, s48, 13"); a("s_xor_b32 s50, s50, s52"); a("s_xor_b32 s54, s54, s52")
            a("s_lshl_b32 s52, s48, 10"); a("s_xor_b32 s66, s66, s52"); a("s_xor_b32 s58, s58, s52")
            a("s_lshl_b32 s52, s48, 6"); a("v_xor_b32 v36, s52, v36"); a("v_xor_b32 v37, s52, v37")
        if o["pre"]:
            a("v_mov_b32 v61, 0x%x" % OOB)
            a("s_cmp_lg_u32 s3, 7"); a("s_cbranch_scc1 L_nopre")
            a("s_lshl_b32 s52, s51, 16"); a("s_lshl_b32 s48, s55, 11"); a("s_add_u32 s52, s52, s48"); a("s_add_u32 s52, s52, 0x%x" % O_OFF)
            a("v_lshlrev_b32 v60, 7, v0"); a("v_add_u32 v61, s52, v60")
            a("s_lshl_b32 s52, s51, 13"); a("s_lshl_b32 s48, s55, 8"); a("s_add_u32 s52, s52, s48"); a("s_add_u32 s52, s52, 0x%x" % (H_OFF - 2048))
            a("v_cmp_gt_u32 vcc, 16, v0"); a("v_add_u32 v62, s52, v60"); a("s_lshl_b32 s52, s51, 11"); a("v_cndmask_b32 v61, v62, v61, vcc")
            a("s_and_b32 s48, s55, 15"); a("s_lshl_b32 s48, s48, 7"); a("s_add_u32 s52, s52, s48"); a("s_add_u32 s52, s52, 0x%x" % ML_OFF)
            a("v_cmp_gt_u32 vcc, 18, v0"); a("v_mov_b32 v62, s52"); a("s_nop 0"); a("v_cndmask_b32 v61, v62, v61, vcc")
            a("L_nopre:")
            ex(0x7ffff, 0)
            a("buffer_load_dword v104, v61, s[32:35], 0 offen %s" % o["prefl"]); vm.issue("pre2")
            ex(-1)
    def qcopy():
        ex(0xffff, 0)
        a("buffer_load_dwordx4 v[90:93], v27, s[32:35], s46 offen sc1")
        a("s_add_u32 s47, s46, 0x%x" % QG_DELTA)
        a("s_waitcnt vmcnt(0)")
        a("buffer_store_dwordx4 v[90:93], v27, s[32:35], s47 offen sc1")
        ex(-1)
    def steps(s):
        for it in s.split(): step(it)
    steps(o["s0"])
    a("s_waitcnt lgkmcnt(0)")
    if o["wsbase"]: a("s_add_u32 s32, s32, 0x%x" % o["wsbase"]); a("s_addc_u32 s33, s33, 0")
    a("s_load_dword s59, s[32:33], 0")
    a("s_mov_b32 s18, s14"); a("s_mov_b32 s19, s11")
    a("s_mov_b32 s22, s10"); a("s_mov_b32 s23, s11")
    a("s_mov_b32 s34, 0x%x" % WS_SIZE); a("s_mov_b32 s35, s11")
    a("s_movk_i32 s60, 0xff"); a("s_mov_b32 s63, 0xffffff00"); a("s_mov_b32 s70, 0")
    a("s_mov_b32 s28, 0x000f000f"); a("s_mov_b32 s29, s28"); a("s_mov_b32 s30, 0x00010001"); a("s_mov_b32 s31, s30")
    if diag and not lite: a("s_mov_b64 s[42:43], 0")
    need_piece(3)
    a("v_lshlrev_b32 v40, 1, v5"); a("v_xor_b32 v40, v1, v40"); a("v_lshlrev_b32 v40, 4, v40"); a("v_lshl_or_b32 v40, v5, 8, v40")
    for i in range(4):
        a("s_lshr_b32 s52, s%d, 4" % (36+i)); a("s_and_b32 s52, s52, 0x80"); a("v_xor_b32 v%d, s52, v40" % VV[i])
    a("v_mov_b32 v88, %d" % TG_L)
    a("v_lshrrev_b32 v2, 2, v1"); a("v_and_b32 v3, 3, v0")
    a("s_and_b32 s52, s3, 3"); a("s_lshl_b32 s62, s52, 5")
    a("v_lshl_add_u32 v11, v5, 3, v2"); a("v_lshlrev_b32 v21, 8, v11"); a("v_lshlrev_b32 v11, 7, v11")
    a("v_lshlrev_b32 v40, 3, v3")
    a("v_and_b32 v41, 2, v2"); a("v_lshlrev_b32 v41, 4, v41")
    a("v_and_b32 v42, 1, v5"); a("v_lshlrev_b32 v43, 6, v42")
    a("v_or_b32 v43, v41, v43")
    a("v_xor_b32 v44, v40, v43"); a("v_xor_b32 v44, s62, v44"); a("v_or_b32 v11, v11, v44")
    a("s_lshl_b32 s52, s49, 8"); a("s_add_u32 s52, s52, %d" % XN_L)
    a("v_lshl_add_u32 v12, v5, 4, s52")
    a("s_cmp_ge_u32 s3, 4"); a("s_cselect_b32 s52, 0x%x, 0" % OOB)
    a("v_lshl_add_u32 v13, v5, 4, s52")
    if not o["skipq"]:
        a("s_cselect_b32 s69, 0, 0x%x" % OOB); a("v_lshl_add_u32 v89, v5, 4, s69")
    a("s_getreg_b32 s57, hwreg(HW_REG_XCC_ID, 0, 3)"); a("s_lshl_b32 s57, s57, 5")
    a("s_lshl_b32 s67, s51, 13"); a("s_add_u32 s67, s67, 0x%x" % Q_OFF)
    a("s_lshl_b32 s52, s49, 11"); a("s_add_u32 s68, s67, s52"); a("s_lshl_b32 s52, s53, 8"); a("s_add_u32 s68, s68, s52")
    a("s_lshl_b32 s52, s62, 1"); a("s_add_u32 s68, s68, s52")
    a("s_lshl_b32 s52, s3, 8"); a("s_add_u32 s67, s67, s52")
    a("v_lshlrev_b32 v14, 4, v1"); a("v_lshl_or_b32 v14, v5, 11, v14")
    a("s_and_b32 s46, s68, 0xffffff00")
    if o["preq"]:
        a("s_lshl_b32 s52, s51, 13"); a("s_lshl_b32 s48, s55, 8"); a("s_add_u32 s52, s52, s48"); a("s_add_u32 s52, s52, 0x%x" % Q_OFF)
        a("s_cmp_eq_u32 s3, 0"); a("s_cselect_b32 s52, s52, 0x%x" % OOB)
        a("v_lshl_add_u32 v104, v0, 7, s52")
        ex(3, 0)
        a("buffer_load_dword v104, v104, s[32:35], 0 offen %s" % o["prefl"]); vm.issue("preq")
        ex(-1)
    steps(o["s0b"])
    vm.wait("wq1")
    if not o.get("ackst"): ST("wq")
    steps(o["s1"])
    a("s_waitcnt lgkmcnt(0)")
    a("s_add_u32 s59, s59, 1"); a("s_and_b32 s59, s59, 0xff"); a("v_mov_b32 v10, s59")
    a("v_xor_b32 v94, s57, v10")
    a("s_barrier")
    ST("b1")
    steps(o["s1b"])
    GV = 13 if o["skipq"] else 89
    if o["skipq"]: a("s_cmp_ge_u32 s3, 4"); a("s_cbranch_scc1 L_qskip")
    for t in range(4):
        a("ds_read_b64_tr_b16 %s, v11 offset:%d" % (vr(40+4*t, 2), t*4096))
        a("ds_read_b64_tr_b16 %s, v11 offset:%d" % (vr(42+4*t, 2), t*4096 + 512))
        a("ds_read_b128 %s, v12 offset:%d" % (vr(56+4*t), t*64))
    for t in range(4):
        lg(3*(3-t))
        a("v_mfma_f32_16x16x32_bf16 v[72:75], %s, %s, %s" % (vr(40+4*t), vr(56+4*t), "0" if t == 0 else "v[72:75]"))
    ex(0x00010001)
    a("s_nop 6")
    addtag(90, 72, 10, 3); addtag(93, 75, 94, 1)
    a("L_qskip:")
    ex(0x00010001)
    a("buffer_store_dwordx4 v[90:93], v13, s[32:35], s68 offen%s" % (" sc1" if o["force_remote"] else "")); vm.issue("ql")
    ex(-1)
    ST("qpub")
    steps(o["s2"])
    vm.wait("poll")
    qsnap = list(vm.q)
    if not o.get("ackst"): ST("p1")
    a("L_qchk:")
    a("v_xor_b32 v82, s57, v79")
    a("v_bitop3_b32 v80, v76, v77, s59 bitop3:0x7e")
    a("v_bitop3_b32 v81, v78, v82, s59 bitop3:0x7e")
    a("v_or_b32 v83, v80, v81"); a("v_and_b32 v83, s60, v83")
    a("v_cmp_ne_u32 vcc, 0, v83")
    a("s_cbranch_vccnz L_qslow" if not o["force_remote"] else "s_branch L_qslow")
    a("L_qok:")
    ST("qok")
    untag(76)
    steps(o["s3"])
    a("s_nop 0")
    rscatter4(76)
    a("v_cvt_pk_bf16_f32 v76, v76, v76")
    a("ds_write_b16 v15, v76")
    if o["qg_always"]: qcopy()
    a("s_waitcnt lgkmcnt(0)")
    a("s_barrier")
    for t in range(4): a("ds_read_b128 %s, v16 offset:%d" % (vr(56+4*t), 64*t))
    a("s_mov_b32 s48, %s" % SCALE); a("s_mov_b32 s49, s48"); a("s_mov_b32 s52, 0xffff0000")
    for t in range(4):
        lg(3-t)
        a("v_mfma_f32_16x16x32_bf16 v[72:75], %s, %s, %s" % (vr(40+4*t), vr(56+4*t), "0" if t == 0 else "v[72:75]"))
    a("ds_read_b32 v94, v88 offset:4")
    a("s_nop 6")
    a("v_cvt_pk_bf16_f32 v76, v72, v73"); a("v_cvt_pk_bf16_f32 v77, v74, v75")
    a("v_lshlrev_b32 v72, 16, v76"); a("v_and_b32 v73, s52, v76"); a("v_lshlrev_b32 v74, 16, v77"); a("v_and_b32 v75, s52, v77")
    a("v_pk_mul_f32 v[72:73], v[72:73], s[48:49]"); a("v_pk_mul_f32 v[74:75], v[74:75], s[48:49]")
    a("v_cvt_pk_bf16_f32 v76, v72, v73"); a("v_cvt_pk_bf16_f32 v77, v74, v75")
    a("v_lshlrev_b32 v72, 16, v76"); a("v_and_b32 v73, s52, v76"); a("v_lshlrev_b32 v74, 16, v77"); a("v_and_b32 v75, s52, v77")
    a("v_max3_f32 v76, v72, v73, v74"); a("v_max_f32 v76, v76, v75")
    if o["dsmax"]:
        ex(0x000f000f)
        a("ds_max_f32 v24, v76")
        ex(-1)
    else:
        allred_rows(76, 77, "v_max_f32")
        ex(0xf, 0)
        a("ds_write_b32 v23, v76")
        ex(-1)
    a("s_waitcnt lgkmcnt(0)")
    a("s_barrier")
    if not o.get("ackst"): ST("b3")
    if o["dsmax"]: a("ds_read_b32 v84, v24")
    else: a("ds_read_b128 v[76:79], v24"); a("ds_read_b128 v[80:83], v24 offset:16")
    steps(o["s4"])
    a("s_mov_b32 s48, %s" % LOG2E)
    a("v_readfirstlane_b32 s69, v94")
    a("s_waitcnt lgkmcnt(0)")
    if not o["dsmax"]:
        a("v_max3_f32 v76, v76, v77, v78"); a("v_max3_f32 v80, v80, v81, v82"); a("v_max3_f32 v76, v76, v79, v83"); a("v_max_f32 v84, v76, v80")
    a("v_mul_f32 v85, s48, v84")
    for i in range(4): a("v_fma_f32 v%d, v%d, s48, -v85" % (72+i, 72+i))
    for i in range(4): a("v_exp_f32 v%d, v%d" % (72+i, 72+i))
    ex(0x000f000f)
    a("v_cvt_pk_bf16_f32 v76, v72, v73"); a("v_cvt_pk_bf16_f32 v77, v74, v75")
    a("ds_write_b64 v22, v[76:77]")
    ex(-1)
    if not o["onesl"]:
        a("v_add_f32 v78, v72, v73"); a("v_add_f32 v79, v74, v75"); a("v_add_f32 v78, v78, v79")
        allred_rows(78, 79, "v_add_f32")
        ex(0xf, 0)
        a("ds_write_b32 v23, v78 offset:128")
        ex(-1)
    if not o.get("ackst"): ST("psm")
    vm.wait("v3", " lgkmcnt(0)")
    a("s_barrier")
    ST("b4")
    for t in range(4):
        a("ds_read_b128 %s, v16 offset:%d" % (vr(56+4*t), 1152 + 64*t))
        a("ds_read_b64_tr_b16 %s, v21 offset:%d" % (vr(40+4*t, 2), t*8192))
        a("ds_read_b64_tr_b16 %s, v21 offset:%d" % (vr(42+4*t, 2), t*8192 + 1024))
    if not o["onesl"]:
        a("ds_read_b128 v[76:79], v24 offset:128"); a("ds_read_b128 v[80:83], v24 offset:144")
    a("s_cmp_lg_u32 s69, 0"); a("s_cbranch_scc1 L_remote")
    a("L_pv:")
    for t in range(4):
        lg(3*(3-t) + (0 if o["onesl"] else 2))
        a("v_mfma_f32_16x16x32_bf16 v[72:75], %s, %s, %s" % (vr(40+4*t), vr(56+4*t), "0" if t == 0 else "v[72:75]"))
    if o["onesl"]:
        a("s_cmp_lg_u32 s3, 0"); a("s_cbranch_scc1 L_pvrest")
        for t in range(4):
            a("v_mfma_f32_16x16x32_bf16 v[80:83], v[108:111], %s, %s" % (vr(56+4*t), "0" if t == 0 else "v[80:83]"))
        ex(0x000f000f)
        a("s_cmp_lg_u32 s69, 0")
        a("s_nop 1")
        addtag(76, 72, 10)
        a("s_cbranch_scc1 L_og0")
        a("buffer_store_dwordx4 v[76:79], v25, s[32:35], s44 offen")
        a("s_nop 0")
        a("v_and_or_b32 v81, v80, s63, v10"); a("v_and_or_b32 v80, v84, s63, v10"); a("v_mov_b32 v82, v10"); a("v_mov_b32 v83, v10")
        ex(0xf, 0)
        a("buffer_store_dwordx4 v[80:83], v26, s[32:35], s45 offen")
        a("s_branch L_opubd")
        a("L_pvrest:")
        ex(0x000f000f)
        a("s_cmp_lg_u32 s69, 0")
        a("s_nop 5")
        addtag(76, 72, 10)
        a("s_cbranch_scc1 L_og1")
        a("buffer_store_dwordx4 v[76:79], v25, s[32:35], s44 offen"); vm.issue("ost")
    else:
        a("s_waitcnt lgkmcnt(0)")
        a("v_add_f32 v76, v76, v77"); a("v_add_f32 v78, v78, v79"); a("v_add_f32 v80, v80, v81"); a("v_add_f32 v82, v82, v83")
        a("v_add_f32 v76, v76, v78"); a("v_add_f32 v80, v80, v82"); a("v_add_f32 v85, v76, v80")
        ex(0x000f000f)
        a("s_cmp_lg_u32 s69, 0")
        addtag(76, 72, 10)
        a("s_cbranch_scc1 L_oglob")
        a("buffer_store_dwordx4 v[76:79], v25, s[32:35], s44 offen"); vm.issue("ost")
        addtag(80, 84, 10, 2)
        a("v_mov_b32 v82, v10"); a("v_mov_b32 v83, v10")
        ex(0xf, 0)
        a("buffer_store_dwordx4 v[80:83], v26, s[32:35], s45 offen"); vm.issue("mlst")
    a("L_opubd:")
    ex(-1)
    ST("opub")
    if o.get("ackst"):
        a("s_waitcnt vmcnt(0)"); ST("oack")
    if o["bo"]: a("s_barrier")
    if o.get("ackst"): ST("bo")
    steps(o["s5"])
    def opolls(masked, fl):
        if masked: a("s_mov_b64 exec, vcc")
        a("buffer_load_dwordx4 v[40:43], v27, s[32:35], s61 offen %s" % fl)
        a("buffer_load_dwordx4 v[44:47], v27, s[32:35], s61 offen offset:1024 %s" % fl)
        if masked: a("s_and_b64 exec, vcc, s[40:41]")
        else: a("s_mov_b64 exec, s[40:41]")
        a("buffer_load_dwordx4 v[48:51], v28, s[32:35], s62 offen %s" % fl)
        a("buffer_load_dwordx4 v[52:55], v28, s[32:35], s62 offen offset:256 %s" % fl)
        ex(-1)
    opolls(False, o["op1"]); vm.issue("p"); vm.issue("p"); vm.issue("p"); vm.issue("op")
    if o.get("ackst"): ST("opi")
    if o["bp"]: a("s_barrier")
    steps(o["s6"])
    if o.get("ackst"): ST("woi")
    vm.wait("op")
    if o.get("ackst"): ST("op1")
    a("L_ochk:")
    tagcheck([48, 52], 68, 69, False)
    tagcheck([40, 44], 56, 57, False)
    a("v_cndmask_b32 v68, 0, v68, s[40:41]")
    a("v_bitop3_b32 v56, v56, v68, s60 bitop3:0xa8")
    a("v_cmp_ne_u32 vcc, 0, v56")
    a("s_cbranch_vccnz L_oretry")
    a("L_ook:")
    ST("ook")
    if o["bq"]: a("s_barrier")
    steps(o["s7"])
    untag(48, 2); untag(52, 2)
    a("v_max_f32 v56, v48, v52")
    a("s_mov_b32 s48, %s" % LOG2E)
    untag(40, 8)
    dpp("v_max_f32", 56, 4); a("s_nop 1"); dpp("v_max_f32", 56, 8)
    allred_rows(56, 57, "v_max_f32")
    a("v_sub_f32 v48, v48, v56"); a("v_sub_f32 v52, v52, v56")
    a("v_mul_f32 v48, s48, v48"); a("v_mul_f32 v52, s48, v52")
    a("v_exp_f32 v48, v48"); a("v_exp_f32 v52, v52")
    ST("exp")
    vm.wait("wo1")
    ST("wo1")
    for ct in range(4): a("ds_read_b64_tr_b16 %s, v%d" % (vr(60+2*ct, 2), 29+ct))
    a("v_mul_f32 v57, v48, v49"); a("v_fmac_f32 v57, v52, v53")
    qp0 = "quad_perm:[0,0,0,0] row_mask:0xf bank_mask:0xf"
    for i in range(4): a("v_mul_f32_dpp v%d, v48, v%d %s" % (40+i, 40+i, qp0))
    for i in range(4): a("v_fmac_f32_dpp v%d, v52, v%d %s" % (40+i, 44+i, qp0))
    dpp("v_add_f32", 57, 4)
    a("v_permlane32_swap_b32 v40, v42"); a("v_permlane32_swap_b32 v41, v43")
    dpp("v_add_f32", 57, 8)
    a("v_add_f32 v40, v40, v42"); a("v_add_f32 v41, v41, v43")
    a("v_mov_b32 v58, v57"); a("s_nop 0")
    a("v_permlane16_swap_b32 v40, v41")
    a("v_permlane16_swap_b32 v57, v58")
    a("v_add_f32 v40, v40, v41"); a("v_add_f32 v57, v57, v58")
    a("v_mov_b32 v58, v57"); a("s_nop 0")
    dpp("v_add_f32", 40, 4)
    a("v_permlane32_swap_b32 v57, v58")
    a("v_add_f32 v57, v57, v58")
    dpp("v_add_f32", 40, 8)
    a("v_rcp_f32 v57, v57")
    a("s_nop 1")
    a("v_mul_f32_dpp v40, v57, v40 %s" % qp0)
    a("s_nop 1")
    for i in range(4): a("v_mov_b32_dpp v%d, v40 quad_perm:[%d,%d,%d,%d] row_mask:0xf bank_mask:0xf" % (44+i, i, i, i, i))
    a("v_cvt_pk_bf16_f32 v48, v44, v45"); a("v_cvt_pk_bf16_f32 v49, v46, v47")
    ST("cmb")
    a("s_waitcnt lgkmcnt(0)")
    a("s_nop 0")
    for ct in range(4): a("v_mfma_f32_16x16x16_bf16 %s, v[48:49], %s, 0" % (vr(68+4*ct), vr(60+2*ct, 2)))
    a("s_mov_b32 s64, 0xffff0000"); a("s_mov_b32 s65, 0"); a("s_mov_b32 s66, 0"); a("s_mov_b32 s67, 0xffff"); a("s_mov_b32 s68, 0"); a("s_mov_b32 s69, s64")
    a("v_cndmask_b32 v68, v68, v72, s[64:65]")
    a("s_nop 0")
    a("v_cndmask_b32 v68, v68, v76, s[66:67]")
    a("v_cndmask_b32 v68, v68, v80, s[68:69]")
    a("ds_write_b32 v33, v68")
    if o["b5"]:
        a("s_waitcnt lgkmcnt(0)")
        ST("rw")
        a("s_barrier")
        ST("b5")
    else:
        a("v_mov_b32 v69, 1")
        ex(1, 0)
        a("ds_add_u32 v88, v69 offset:8")
        ex(-1)
        a("L_b5:")
        a("ds_read_b32 v70, v88 offset:8")
        a("s_waitcnt lgkmcnt(0)")
        a("v_cmp_gt_u32 vcc, 8, v70")
        a("s_cbranch_vccnz L_b5")
    ST("apub")
    dump_stamps("att")
    a("s_endpgm")
    a("L_qslow:")
    if diag and not lite:
        a("s_cmp_lg_u32 s70, 0"); a("s_cbranch_scc1 L_qd"); a("s_mov_b64 s[42:43], vcc"); a("L_qd:")
    a("v_xor_b32 v81, s59, v78"); a("v_xor_b32 v82, s59, v79"); a("v_and_b32 v82, 31, v82")
    a("v_or3_b32 v83, v80, v81, v82"); a("v_and_b32 v83, s60, v83")
    a("v_cmp_ne_u32 vcc, 0, v83")
    a("s_cbranch_vccz L_qrem")
    a("s_add_u32 s70, s70, 1")
    for k, (nm, reg) in enumerate((("pollB", 96), ("pollC", 100))):
        if nm in qsnap:
            a("s_cmp_eq_u32 s70, %d" % (k+1)); a("s_cbranch_scc0 L_qn%d" % k)
            vm.q = list(qsnap); vm.wait(nm)
            for i in range(4): a("v_mov_b32 v%d, v%d" % (76+i, reg+i))
            a("s_branch L_qchk")
            a("L_qn%d:" % k)
    a("s_and_b32 s48, s70, %d" % (o["gper"]-1)); a("s_cmp_eq_u32 s48, %d" % (o["gper"]//2))
    a("s_cbranch_scc0 L_qnog")
    qcopy()
    a("L_qnog:")
    a("s_cmp_lt_u32 s70, %d" % (o["gper"]//2)); a("s_cbranch_scc0 L_qwide")
    a("buffer_load_dwordx4 v[76:79], v14, s[32:35], s67 offen %s" % o["rpoll"])
    a("s_waitcnt vmcnt(0)")
    a("s_branch L_qchk")
    a("L_qwide:")
    a("s_cmp_eq_u32 s48, 0"); a("s_cselect_b32 s48, 0x%x, 0" % QG_DELTA)
    a("s_add_u32 s48, s48, s67")
    a("buffer_load_dwordx4 v[76:79], v14, s[32:35], s48 offen sc1")
    a("s_cmp_lt_u32 s70, 0x%x" % SPIN)
    a("s_waitcnt vmcnt(0)")
    a("s_cbranch_scc1 L_qchk")
    a("L_qrem:")
    a("v_mov_b32 v80, 1")
    a("ds_write_b32 v88, v80 offset:4")
    a("s_branch L_qok")
    a("L_remote:")
    qcopy()
    for r in (44, 45, 61, 62): a("s_add_u32 s%d, s%d, 0x%x" % (r, r, G2_DELTA))
    a("s_branch L_pv")
    if o["onesl"]:
        a("L_og0:")
        a("buffer_store_dwordx4 v[76:79], v25, s[32:35], s44 offen sc1")
        a("s_nop 0")
        a("v_and_or_b32 v81, v80, s63, v10"); a("v_and_or_b32 v80, v84, s63, v10"); a("v_mov_b32 v82, v10"); a("v_mov_b32 v83, v10")
        ex(0xf, 0)
        a("buffer_store_dwordx4 v[80:83], v26, s[32:35], s45 offen sc1")
        a("s_branch L_opubd")
        a("L_og1:")
        a("buffer_store_dwordx4 v[76:79], v25, s[32:35], s44 offen sc1")
        a("s_branch L_opubd")
    else:
        a("L_oglob:")
        a("buffer_store_dwordx4 v[76:79], v25, s[32:35], s44 offen sc1")
        addtag(80, 84, 10, 2)
        a("v_mov_b32 v82, v10"); a("v_mov_b32 v83, v10")
        ex(0xf, 0)
        a("buffer_store_dwordx4 v[80:83], v26, s[32:35], s45 offen sc1")
        a("s_branch L_opubd")
    a("L_oretry:")
    a("s_add_u32 s70, s70, 1"); a("s_lshl_b32 s48, s69, 8"); a("s_add_u32 s48, s48, s70"); a("s_cmp_lt_u32 s48, 24"); a("s_cbranch_scc0 L_owide")
    opolls(True, o["op2"])
    a("s_waitcnt vmcnt(0)")
    a("s_branch L_ochk")
    a("L_owide:")
    opolls(True, "sc1")
    a("s_cmp_lt_u32 s70, 0x%x" % SPIN)
    a("s_waitcnt vmcnt(0)")
    a("s_cbranch_scc1 L_ochk")
    a("s_branch L_ook")

    def w1addr():
        a("s_lshr_b32 s52, s51, 1"); a("s_mul_i32 s61, s52, 448"); a("s_and_b32 s48, s51, 1"); a("s_lshl_b32 s52, s48, 8"); a("s_add_u32 s61, s61, s52")
        a("s_lshl_b32 s52, s48, 4"); a("s_sub_u32 s62, 64, s52")
        a("v_and_b32 v2, 0x70, v1"); a("v_lshlrev_b32 v3, 1, v0"); a("v_and_b32 v3, 32, v3"); a("v_xor_b32 v2, v2, v3")
        a("v_lshrrev_b32 v3, 3, v0")
        a("v_mul_u32_u24 v4, 3584, v3"); a("v_add_u32 v4, v4, v2")
        a("s_add_u32 s52, s49, s48"); a("s_cmp_ge_u32 s52, 4"); a("s_cselect_b32 s68, 0x%x, 0" % OOB)
        a("v_add_u32 v4, s68, v4"); a("v_xor_b32 v6, 64, v4")
        a("v_lshl_or_b32 v7, v3, 10, v2"); a("v_xor_b32 v8, 64, v7")
        a("s_mul_i32 s50, s53, %d" % (64*3584)); a("s_lshl_b32 s52, s49, 7"); a("s_add_u32 s50, s50, s52"); a("s_lshl_b32 s52, s61, 1"); a("s_add_u32 s50, s50, s52")
        a("s_mov_b32 m0, %d" % W1_L)
        a("s_mov_b32 s26, %d" % (512*3584)); a("s_mov_b32 s27, s7")
    def w1dma():
        for i in range(8):
            dma(4 if i % 2 == 0 else 6, 24, "s50"); vm.issue("w1")
            if i < 7:
                a("s_add_u32 m0, m0, 0x400"); a("s_add_u32 s50, s50, %d" % (8*3584))
    def w2dma(track=False):
        a("s_mov_b32 m0, %d" % W2_L)
        a("s_cmp_eq_u32 s62, 64"); a("s_cselect_b32 s56, 0, 0x%x" % OOB)
        for i in range(8):
            if i == 6:
                a("v_add_u32 v7, s56, v7"); a("v_add_u32 v8, s56, v8")
            dma(7 if i % 2 == 0 else 8, 28, "s54")
            if track: vm.issue("w2")
            if i < 7:
                a("s_add_u32 m0, m0, 0x400"); a("s_add_u32 s54, s54, 8192")
    role[0] = "aux"
    vm = VM(a); vm.issue("x")
    a("L_aux:")
    ST("a0")
    if o["prio"]: a("s_setprio 3")
    if o["wsbase"]: a("s_add_u32 s32, s32, 0x%x" % o["wsbase"]); a("s_addc_u32 s33, s33, 0")
    a("s_mov_b32 s34, 0x%x" % WS_SIZE); a("s_mov_b32 s35, s7")
    if o["amp"] and o["amp"][1].startswith("skew"):
        a("s_mov_b32 s34, 0x20000000"); a("s_lshl_b32 s52, s2, 2"); a("s_add_u32 s52, s52, 0x%x" % ST_OFF)
        a("v_mov_b32 v2, 0"); a("v_mov_b32 v3, s72"); a("buffer_store_dword v3, v2, s[32:35], s52 offen sc1"); vm.issue("st")
    a("s_lshr_b32 s55, s2, 3")
    a("s_and_b32 s53, s55, 7")
    a("s_mov_b32 s71, 0xffff0000")
    a("v_add_u32 v9, %d, v1" % XN_L)
    if pf:
        a("s_cmp_ge_u32 s2, %d" % o["pfwgs"]); a("s_cselect_b32 s52, 0x%x, 0" % OOB)
        a("s_getpc_b64 s[64:65]")
        a("L_pcref:")
        a("s_sub_u32 s64, s64, L_pcref-%s" % KNAME); a("s_subb_u32 s65, s65, 0")
        a("s_mov_b32 s66, L_codeend-%s" % KNAME); a("s_mov_b32 s67, s7")
        a("v_lshl_add_u32 v2, v0, 7, s52")
        a("buffer_load_dword v38, v2, s[64:67], 0 offen offset:256"); vm.issue("pf")
    if o["tlb"]:
        a("s_load_dwordx2 s[16:17], s[0:1], 16"); a("s_load_dwordx2 s[20:21], s[0:1], 32"); a("s_load_dwordx2 s[28:29], s[0:1], 64")
        a("s_lshl_b32 s52, s51, 24"); a("s_lshl_b32 s48, s55, 15"); a("s_add_u32 s52, s52, s48"); a("s_add_u32 s52, s52, 0xf00000"); a("v_mov_b32 v2, s52")
        a("s_lshl_b32 s52, s51, 2"); a("s_add_u32 s52, s52, s49"); a("s_lshl_b32 s52, s52, 17"); a("v_mov_b32 v3, s52")
        a("s_lshr_b32 s52, s51, 1"); a("s_mul_i32 s52, s52, 448"); a("s_and_b32 s48, s51, 1"); a("s_lshl_b32 s48, s48, 8"); a("s_add_u32 s52, s52, s48"); a("s_lshl_b32 s52, s52, 10"); a("v_mov_b32 v4, s52")
        a("s_mul_i32 s52, s53, %d" % (64*3584)); a("v_mov_b32 v5, s52")
        a("s_lshl_b32 s52, s51, 16"); a("s_add_u32 s52, s52, 0x%x" % O_OFF); a("v_mov_b32 v6, s52")
        ex(1, 0)
        a("s_waitcnt lgkmcnt(0)")
        if "v" in o["tlb"]: a("global_load_dword v90, v2, s[16:17] nt"); vm.issue("t")
        if "o" in o["tlb"]: a("global_load_dword v90, v3, s[20:21] nt"); vm.issue("t")
        if "2" in o["tlb"]: a("global_load_dword v90, v4, s[28:29] nt"); vm.issue("t")
        if "1" in o["tlb"]: a("global_load_dword v90, v5, s[24:25] nt"); vm.issue("t")
        if "w" in o["tlb"]: a("global_load_dword v90, v6, s[32:33] nt"); vm.issue("t")
        ex(-1)
    a("v_mov_b32 v88, %d" % TG_L); a("v_mov_b32 v11, 0")
    a("ds_write_b32 v88, v11 offset:4")
    if not o["b5"]: a("ds_write_b32 v88, v11 offset:8")
    if o["dsmax"]:
        a("v_mov_b32 v16, 0xff800000"); a("v_lshlrev_b32 v17, 2, v0"); a("v_and_b32 v17, 12, v17"); a("v_add_u32 v17, %d, v17" % MX_L)
        a("ds_write_b32 v17, v16")
    if o["w1at"] == "a0":
        w1addr(); a("s_waitcnt lgkmcnt(0)"); w1dma()
    vm.wait("x")
    ST("x")
    for i in range(4):
        a("v_lshlrev_b32 v%d, 16, v%d" % (16+2*i, 12+i)); a("v_and_b32 v%d, s71, v%d" % (17+2*i, 12+i))
    a("v_readfirstlane_b32 s52, v16")
    a("s_mov_b32 s48, 0x3b000000")
    a("s_nop 0")
    for i in range(8): a("v_subrev_f32 v%d, s52, v%d" % (24+i, 16+i))
    a("v_pk_add_f32 v[32:33], v[24:25], v[26:27]"); a("v_pk_mul_f32 v[34:35], v[24:25], v[24:25]")
    a("v_pk_add_f32 v[36:37], v[28:29], v[30:31]"); a("v_pk_fma_f32 v[34:35], v[26:27], v[26:27], v[34:35]")
    a("v_pk_add_f32 v[32:33], v[32:33], v[36:37]"); a("v_pk_fma_f32 v[34:35], v[28:29], v[28:29], v[34:35]")
    a("v_pk_fma_f32 v[34:35], v[30:31], v[30:31], v[34:35]")
    a("v_add_f32 v32, v32, v33"); a("v_add_f32 v33, v34, v35")
    a("s_nop 0")
    for ror in (8, 4, 2, 1):
        dpp("v_add_f32", 32, ror); dpp("v_add_f32", 33, ror); a("s_nop 0")
    a("s_nop 0")
    a("v_permlane32_swap_b32 v32, v33"); a("v_add_f32 v32, v32, v33")
    a("v_mov_b32 v33, v32"); a("s_nop 1"); a("v_permlane16_swap_b32 v32, v33"); a("v_add_f32 v32, v32, v33")
    a("v_mul_f32 v32, s48, v32")
    a("v_mov_b32 v33, v32"); a("s_nop 1"); a("v_permlane32_swap_b32 v32, v33")
    a("v_fma_f32 v35, -v32, v32, v33"); a("v_add_f32 v34, s52, v32"); a("v_max_f32 v35, 0, v35")
    a("v_cvt_pk_bf16_f32 v34, v34, v35")
    a("v_and_b32 v35, s71, v34"); a("v_lshlrev_b32 v34, 16, v34")
    a("v_add_f32 v35, 0x3727c5ac, v35")
    a("v_cvt_pk_bf16_f32 v35, v35, v35"); a("v_and_b32 v35, s71, v35")
    a("v_sqrt_f32 v35, v35")
    for i in range(8): a("v_sub_f32 v%d, v%d, v34" % (24+i, 16+i))
    a("v_cvt_pk_bf16_f32 v35, v35, v35"); a("v_and_b32 v35, s71, v35"); a("v_rcp_f32 v35, v35")
    for i in range(4): a("v_cvt_pk_bf16_f32 v%d, v%d, v%d" % (12+i, 24+2*i, 25+2*i))
    for i in range(4):
        a("v_lshlrev_b32 v%d, 16, v%d" % (24+2*i, 12+i)); a("v_and_b32 v%d, s71, v%d" % (25+2*i, 12+i))
    for i in range(8): a("v_mul_f32 v%d, v%d, v35" % (24+i, 24+i))
    for i in range(4): a("v_cvt_pk_bf16_f32 v%d, v%d, v%d" % (12+i, 24+2*i, 25+2*i))
    a("ds_write_b128 v9, v[12:15]")
    a("s_waitcnt lgkmcnt(0)")
    ST("ln")
    a("s_barrier")
    if o["prio"]: a("s_setprio 0")
    a("s_load_dword s57, s[32:33], 0")
    if o["w1at"] != "a0": w1addr()
    if o["w1at"] == "b1": w1dma()
    a("s_load_dwordx2 s[28:29], s[0:1], 64")
    a("s_load_dwordx2 s[36:37], s[0:1], 56")
    a("s_load_dwordx2 s[40:41], s[0:1], 72")
    a("s_load_dwordx2 s[44:45], s[0:1], 80")
    a("s_movk_i32 s60, 0xff"); a("s_mov_b32 s63, 0xffffff00"); a("s_mov_b32 s70, 0")
    a("v_lshrrev_b32 v5, 4, v0"); a("v_and_b32 v1, 15, v0")
    a("v_lshrrev_b32 v2, 2, v1"); a("v_and_b32 v3, 3, v0")
    a("v_lshl_add_u32 v16, v5, 3, v2"); a("v_lshlrev_b32 v16, 7, v16")
    a("v_lshlrev_b32 v17, 3, v3"); a("v_and_b32 v18, 2, v2"); a("v_lshlrev_b32 v18, 4, v18"); a("v_and_b32 v19, 1, v5"); a("v_lshlrev_b32 v19, 6, v19")
    a("v_or_b32 v18, v18, v19"); a("v_xor_b32 v17, v17, v18"); a("v_or_b32 v16, v16, v17")
    a("v_add_u32 v16, %d, v16" % W1_L)
    a("v_xor_b32 v17, 32, v16"); a("v_xor_b32 v18, 64, v16"); a("v_xor_b32 v19, 0x60, v16")
    a("s_lshl_b32 s52, s53, 7"); a("s_add_u32 s52, s52, %d" % XN_L); a("v_lshl_add_u32 v20, v5, 4, s52")
    a("v_lshl_add_u32 v21, v5, 4, s68")
    a("s_lshl_b32 s66, s51, 13"); a("s_add_u32 s66, s66, 0x%x" % H_OFF)
    a("s_lshl_b32 s52, s53, 10"); a("s_add_u32 s67, s66, s52"); a("s_lshl_b32 s52, s49, 8"); a("s_add_u32 s67, s67, s52")
    a("s_mov_b32 s30, s26"); a("s_mov_b32 s31, s7")
    a("s_movk_i32 s38, 3584"); a("s_mov_b32 s39, s7")
    a("s_mov_b32 s42, s6"); a("s_mov_b32 s43, s7")
    a("s_mov_b32 s46, s6"); a("s_mov_b32 s47, s7")
    a("ds_read_b128 v[56:59], v20"); a("ds_read_b128 v[60:63], v20 offset:64")
    a("s_mul_i32 s52, s62, s49"); a("s_add_u32 s69, s61, s52")
    a("v_lshl_add_u32 v11, v1, 2, v5")
    a("v_add_lshl_u32 v22, v11, s69, 1")
    a("v_and_b32 v23, 1, v5"); a("v_lshl_add_u32 v23, v3, 1, v23")
    a("s_lshl_b32 s48, s51, 6"); a("s_lshl_b32 s56, s55, 3"); a("s_add_u32 s48, s48, s56")
    a("v_add_lshl_u32 v23, v23, s48, 1")
    a("v_lshlrev_b32 v80, 4, v1"); a("v_lshl_or_b32 v80, v5, 10, v80")
    a("s_lshl_b32 s52, s52, 2"); a("s_add_u32 s64, s66, s52"); a("s_add_u32 s65, s64, 4096")
    a("s_lshl_b32 s54, s69, 10"); a("s_lshl_b32 s52, s53, 7"); a("s_add_u32 s54, s54, s52")
    a("s_waitcnt lgkmcnt(0)")
    a("s_add_u32 s57, s57, 1"); a("s_and_b32 s59, s57, 0xff"); a("v_mov_b32 v10, s59")
    a("buffer_load_ushort v81, v22, s[36:39], 0 offen"); vm.issue("b1")
    a("buffer_load_ushort v82, v23, s[40:43], 0 offen"); vm.issue("b2")
    a("buffer_load_ushort v83, v23, s[4:7], 0 offen"); vm.issue("xc")
    if o["w1at"] == "bk" or o["w2at"] == "bk" or o["bk"]:
        if o["bk"]: a("s_barrier")
        if o["w1at"] == "bk": w1dma()
        if o["w2at"] == "bk": w2dma(True)
    vm.wait("w1")
    ST("w1")
    def tile_gemv(dst):
        for ct in range(4):
            for t in range(2):
                a("ds_read_b64_tr_b16 %s, v%d offset:%d" % (vr(24+8*ct+4*t, 2), 16+ct, t*4096))
                a("ds_read_b64_tr_b16 %s, v%d offset:%d" % (vr(26+8*ct+4*t, 2), 16+ct, t*4096 + 512))
            if ct == 1: a("s_waitcnt lgkmcnt(4)")
        for ct in range(4):
            lg(4*(3-ct))
            a("v_mfma_f32_16x16x32_bf16 %s, %s, v[56:59], 0" % (vr(64+4*ct), vr(24+8*ct)))
            a("v_mfma_f32_16x16x32_bf16 %s, %s, v[60:63], %s" % (vr(64+4*ct), vr(28+8*ct), vr(64+4*ct)))
        if dst is None: return
        a("s_nop 1")
        for ct in range(4):
            if ct == 3: a("s_nop 3")
            addtag(dst+4*ct, 64+4*ct, 10)
    tile_gemv(40)
    ST("hrdy")
    a("s_barrier")
    a("ds_read_b32 v24, v88 offset:4")
    a("s_waitcnt lgkmcnt(0)")
    a("v_readfirstlane_b32 s58, v24")
    ex(0x00010001)
    a("s_cmp_lg_u32 s58, 0"); a("s_cbranch_scc1 L_hglob")
    for ct in range(4): a("buffer_store_dwordx4 %s, v21, s[32:35], s67 offen offset:%d" % (vr(40+4*ct), 64*ct))
    a("L_hpubd:")
    ex(-1)
    ST("hpub")
    if o["w2at"] == "b2": w2dma()
    for r in (16, 17, 18, 19): a("v_add_u32 v%d, %d, v%d" % (r, W2_L - W1_L, r))
    a("v_lshlrev_b32 v84, 1, v11"); a("v_add_u32 v84, %d, v84" % HS_L)
    a("v_lshlrev_b32 v85, 4, v5"); a("v_add_u32 v85, %d, v85" % HS_L)
    a("v_add_u32 v86, %d, v85" % (FS_L - HS_L))
    a("s_barrier")
    if o["w2at"] == "b3": w2dma()
    a("s_barrier")
    ST("b4")
    if o["w2at"] == "b4": w2dma()
    a("v_cmp_gt_u32 vcc, s62, v11")
    a("s_mov_b64 s[68:69], vcc")
    def hpolls(fl):
        a("buffer_load_dwordx4 v[24:27], v80, s[32:35], s64 offen %s" % fl)
        a("buffer_load_dwordx4 v[28:31], v80, s[32:35], s65 offen %s" % fl)
    hpolls(o["hp1"])
    if o["bo"]: a("s_barrier")
    if o["bp"]: a("s_barrier")
    if o["bq"]: a("s_barrier")
    if o["w2at"] == "bo": w2dma()
    a("s_waitcnt vmcnt(%d)" % (8 if o["w2at"] == "bo" else 0))
    a("L_hchk:")
    tagcheck([24, 28], 32, 33)
    a("v_cmp_ne_u32 vcc, 0, v32")
    a("s_and_b64 vcc, vcc, s[68:69]")
    a("s_cbranch_vccnz L_hretry")
    a("L_hok:")
    ST("hok")
    untag(24, 8)
    for i in range(4): a("v_add_f32 v%d, v%d, v%d" % (24+i, 24+i, 28+i))
    a("s_nop 1")
    rscatter4(24)
    a("v_cvt_pk_bf16_f32 v24, v24, v24"); a("v_and_b32 v24, s71, v24")
    a("v_lshlrev_b32 v81, 16, v81"); a("v_add_f32 v24, v24, v81")
    a("v_cvt_pk_bf16_f32 v24, v24, v24"); a("v_and_b32 v24, s71, v24")
    a("v_mul_f32 v25, v24, v24"); a("v_mov_b32 v26, 0x3d372713"); a("v_fma_f32 v25, v25, v26, 1.0"); a("v_mul_f32 v25, v25, v24")
    a("v_mul_f32 v25, 0xc0135761, v25")
    a("v_exp_f32 v25, v25"); a("s_nop 0"); a("v_add_f32 v25, 1.0, v25"); a("v_rcp_f32 v25, v25"); a("s_nop 0"); a("v_mul_f32 v24, v24, v25")
    a("v_cvt_pk_bf16_f32 v24, v24, v24")
    a("v_cndmask_b32 v24, 0, v24, s[68:69]")
    a("ds_write_b16 v84, v24")
    a("s_waitcnt lgkmcnt(0)")
    a("ds_read_b128 v[56:59], v85"); a("ds_read_b128 v[60:63], v85 offset:64")
    a("v_and_b32 v36, 31, v0"); a("v_lshrrev_b32 v37, 5, v0"); a("v_lshlrev_b32 v87, 3, v36")
    a("v_lshl_add_u32 v84, v37, 10, v87"); a("v_add_u32 v84, %d, v84" % R_L); a("v_add_u32 v87, %d, v87" % FS_L)
    a("s_lshl_b32 s52, s51, 2"); a("s_add_u32 s52, s52, s49")
    a("s_lshl_b32 s66, s53, 14"); a("s_add_u32 s66, s66, 0x%x" % AF_OFF)
    a("s_lshl_b32 s64, s51, 14"); a("s_add_u32 s64, s64, 0x%x" % AF_OFF)
    if o["aflay"] == "C":
        a("v_lshrrev_b32 v37, 2, v36"); a("v_lshlrev_b32 v37, 11, v37"); a("v_lshl_or_b32 v85, v3, 4, v37")
        a("s_lshl_b32 s52, s52, 6"); a("s_add_u32 s66, s66, s52")
        a("s_lshl_b32 s52, s55, 11"); a("s_add_u32 s64, s64, s52"); a("s_add_u32 s65, s64, 1024")
        a("v_lshlrev_b32 v80, 4, v0")
    else:
        a("v_lshlrev_b32 v85, 4, v36")
        a("s_lshl_b32 s52, s52, 9"); a("s_add_u32 s66, s66, s52")
        a("s_lshl_b32 s52, s55, 6"); a("s_add_u32 s64, s64, s52"); a("s_add_u32 s65, s64, 8192")
        a("v_lshrrev_b32 v80, 2, v0"); a("v_lshlrev_b32 v80, 9, v80"); a("v_lshl_or_b32 v80, v3, 4, v80")
    a("v_cmp_gt_u32 vcc, 32, v0")
    a("s_waitcnt vmcnt(0)")
    a("s_nop 0")
    a("v_cndmask_b32 v82, v82, v83, vcc"); a("v_lshlrev_b32 v82, 16, v82")
    tile_gemv(None)
    ex(0x00010001)
    a("s_cmp_ge_u32 s2, 64")
    for ct in range(4):
        if ct == 3: a("s_nop 3")
        a("ds_write_b128 v86, %s offset:%d" % (vr(64+4*ct), 64*ct))
    ex(-1)
    a("s_waitcnt lgkmcnt(0)")
    ST("fpub")
    a("ds_read_b64 v[34:35], v87")
    a("s_barrier")
    for i in range(4): a("ds_read_b64 v[%d:%d], v84 offset:%d" % (24+2*i, 25+2*i, 256*i))
    a("s_waitcnt lgkmcnt(2)" if not (diag and not lite) else "s_waitcnt lgkmcnt(0)")
    a("v_pk_add_f32 v[24:25], v[24:25], v[26:27]")
    a("s_waitcnt lgkmcnt(0)")
    a("v_pk_add_f32 v[28:29], v[28:29], v[30:31]")
    a("v_pk_add_f32 v[32:33], v[24:25], v[28:29]")
    addtag(34, 34, 10, 2)
    a("v_permlane32_swap_b32 v32, v33")
    a("v_add_f32 v32, v32, v33")
    a("v_mov_b32 v33, v32"); a("s_nop 1"); a("v_permlane32_swap_b32 v32, v33")
    ex(0xffffffff, 0)
    addtag(32, 32, 10, 2)
    a("buffer_store_dwordx4 v[32:35], v85, s[32:35], s66 offen sc1")
    ex(-1)
    ST("apub")
    a("s_cbranch_scc1 L_auxend")
    if o["b6"]: a("s_waitcnt vmcnt(0)")
    ST("fok")
    def gload():
        a("buffer_load_dwordx4 v[24:27], v80, s[32:35], s64 offen sc1")
        a("buffer_load_dwordx4 v[28:31], v80, s[32:35], s65 offen sc1")
    gload()
    a("s_waitcnt vmcnt(0)")
    a("L_apoll:")
    tagcheck([24, 28], 56, 57)
    a("v_cmp_ne_u32 vcc, 0, v56")
    a("s_cbranch_vccz L_apoll_ok")
    if o["fmask"]: a("s_mov_b64 exec, vcc")
    gload()
    if o["fmask"]: ex(-1)
    a("s_add_u32 s70, s70, 1"); a("s_cmp_lt_u32 s70, 0x%x" % SPIN)
    a("s_waitcnt vmcnt(0)")
    a("s_cbranch_scc1 L_apoll")
    a("L_apoll_ok:")
    untag(24, 8)
    a("v_pk_add_f32 v[24:25], v[24:25], v[28:29]"); a("v_pk_add_f32 v[26:27], v[26:27], v[30:31]")
    a("s_nop 1")
    rscatter4(24)
    for ror in (4, 8):
        a("s_nop 1"); dpp("v_add_f32", 24, ror)
    a("v_cvt_pk_bf16_f32 v24, v24, v24"); a("v_and_b32 v24, s71, v24")
    a("v_add_f32 v24, v24, v82"); a("v_cvt_pk_bf16_f32 v24, v24, v24"); a("v_and_b32 v24, s71, v24")
    a("v_mov_b32 v25, v24"); a("s_nop 1")
    a("v_permlane32_swap_b32 v24, v25")
    a("v_add_f32 v24, v24, v25"); a("v_cvt_pk_bf16_f32 v24, v24, v24")
    ex(0x000f000f, 0)
    a("buffer_store_short v24, v23, s[44:47], 0 offen %s" % o["outsc"])
    a("s_cmp_lg_u32 s2, 0"); a("s_cbranch_scc1 L_auxend")
    ex(1, 0)
    a("v_mov_b32 v60, s57"); a("v_mov_b32 v61, 0")
    a("buffer_store_dword v60, v61, s[32:35], 0 offen %s" % o["outsc"])
    a("L_auxend:")
    ST("end")
    dump_stamps("aux")
    a("L_end:")
    a("s_endpgm")
    a("L_hretry:")
    a("s_add_u32 s70, s70, 1"); a("s_lshl_b32 s48, s58, 8"); a("s_add_u32 s48, s48, s70"); a("s_cmp_lt_u32 s48, 24"); a("s_cbranch_scc0 L_hwide")
    hpolls(o["hp2"])
    a("s_waitcnt vmcnt(0)")
    a("s_branch L_hchk")
    a("L_hwide:")
    hpolls("sc1")
    a("s_cmp_lt_u32 s70, 0x%x" % SPIN)
    a("s_waitcnt vmcnt(0)")
    a("s_cbranch_scc1 L_hchk")
    a("s_branch L_hok")
    a("L_hglob:")
    for r in (64, 65, 67): a("s_add_u32 s%d, s%d, 0x%x" % (r, r, G2_DELTA))
    for ct in range(4): a("buffer_store_dwordx4 %s, v21, s[32:35], s67 offen offset:%d sc1" % (vr(40+4*ct), 64*ct))
    a("s_branch L_hpubd")
    a("L_codeend:")
    text = a.text()
    hdr = "; fused LN + GQA decode attention (last 4096 keys) + GELU FFN, one launch, 256 workgroups x 9 waves\n"
    src = kernel_file(text, 256, 576, LDS_BYTES, vgpr=112, sgpr=102, header=hdr)
    open(path, "w").write(src)
    return names, lint.lint(text)

if __name__ == "__main__":
    names, probs = gen(sys.argv[1] if len(sys.argv) > 1 else "k.s", diag=(len(sys.argv) > 2 and sys.argv[2] == "diag"))
    for p in probs: print(p)
```
